```python
import torch

def _softmax(x, axis=-1):
    return torch.softmax(x, dim=axis)
def _gelu(x):
    return torch.nn.functional.gelu(x, approximate="tanh")
def _silu(x):
    return torch.nn.functional.silu(x)
def _sigmoid(x):
    return torch.sigmoid(x)
def _layernorm(x, axis=-1, eps=1e-5):
    m = x.mean(dim=axis, keepdim=True)
    v = x.var(dim=axis, keepdim=True, unbiased=False)
    return (x - m) / torch.sqrt(v + eps)
def _scatter_add(tgt, idx, src, axis=0):
    return tgt.clone().index_add_(axis, idx, src)
def _segment_sum(src, seg, n):
    out = torch.zeros((n,) + src.shape[1:], dtype=src.dtype)
    return out.index_add_(0, seg, src)
def _pad(x, pw):
    flat = tuple(v for pair in reversed(pw) for v in pair)
    return torch.nn.functional.pad(x, flat)

kernel_name = 'recurrent_scan__sliding_block_cached__dense_activation_relu__decode'

def setup_inputs():

    _w = (lambda a: (lambda t: t.to(torch.bfloat16) if t.is_floating_point() else t)(torch.as_tensor(a)))
    def _A_setup():
        B, Sq, D = 4, 1, 512
        Hq, Hkv, Sk, Dh = 32, 8, 8192, 128
        assert Hq % Hkv == 0, (Hq, Hkv)
        return {
            "x": _w((lambda *s: torch.randn(*s, dtype=torch.bfloat16) * 0.05)(B, Sq, D)),
            "k_cache": _w((lambda *s: torch.randn(*s, dtype=torch.bfloat16) * 1.6)(B, Hkv, Sk, Dh)),
            "v_cache": _w((lambda *s: torch.randn(*s, dtype=torch.bfloat16) * 0.2)(B, Hkv, Sk, Dh)),
            "wq": _w((lambda *s: torch.randn(*s, dtype=torch.bfloat16) * 1.6)(D, Hq * Dh) * (D ** -0.5)),
            "wo": _w((lambda *s: torch.randn(*s, dtype=torch.bfloat16) * 0.2)(Hq * Dh, D) * ((Hq * Dh) ** -0.5)),
        }
    _A_in = _A_setup()

    def _B_setup():
        B, S, D, Dff = 4, 1, 512, 1792
        return {
            "x": _w((lambda *s: torch.randn(*s, dtype=torch.bfloat16) * 0.05)(B, S, D)),
            "w1": _w((lambda *s: torch.randn(*s, dtype=torch.bfloat16) * 0.1)(D, Dff)),
            "w2": _w((lambda *s: torch.randn(*s, dtype=torch.bfloat16) * 0.1)(Dff, D)),
        }
    _B_in = _B_setup()

    return {
        "A_x": _A_in["x"],
        "A_k_cache": _A_in["k_cache"],
        "A_v_cache": _A_in["v_cache"],
        "A_wq": _A_in["wq"],
        "A_wo": _A_in["wo"],
        "B_x": _B_in["x"],
        "B_w1": _B_in["w1"],
        "B_w2": _B_in["w2"],
    }

def reference(A_x, A_k_cache, A_v_cache, A_wq, A_wo, B_x, B_w1, B_w2):
    def _A_ref(x, k_cache, v_cache, wq, wo):
        B, Sq, D = x.shape
        Hq, Dh = 32, 128
        Hkv, Sk = k_cache.shape[1], k_cache.shape[2]
        W = min(4096, max(256, Sk // 4))
        rep = Hq // Hkv
        q = (lambda x, *d: x.permute(*d))((x @ wq).reshape(B, Sq, Hq, Dh), 0, 2, 1, 3)
        k = (lambda x, n, axis: torch.repeat_interleave(x, n, dim=axis))(k_cache[:, :, Sk - W:, :], rep, axis=1)
        v = (lambda x, n, axis: torch.repeat_interleave(x, n, dim=axis))(v_cache[:, :, Sk - W:, :], rep, axis=1)
        scores = torch.einsum("bhqd,bhkd->bhqk", q, k) * (Dh ** -0.5)
        p = _softmax(scores, axis=-1)
        o = torch.einsum("bhqk,bhkd->bhqd", p, v)
        return (lambda x, *d: x.permute(*d))(o, 0, 2, 1, 3).reshape(B, Sq, Hq * Dh) @ wo

    def _B_ref(x, w1, w2):
        h = torch.einsum("bsd,df->bsf", x, w1)
        zero = torch.zeros_like(h)
        h = torch.maximum(h, zero)
        return torch.einsum("bsf,fd->bsd", h, w2)

    x = A_x
    xn = _layernorm(x, axis=-1)
    s = _A_ref(xn, A_k_cache, A_v_cache, A_wq, A_wo)
    g = _silu(_B_ref(xn, B_w1, B_w2))
    return x + s * g
```

```python
import re
TRANS = ("v_exp_f32", "v_log_f32", "v_rcp_f32", "v_rsq_f32", "v_sqrt_f32")
def regs(tok):
    tok = tok.strip().lstrip("-")
    m = re.fullmatch(r"([vs])(\d+)", tok)
    if m: return [(m.group(1), int(m.group(2)))]
    m = re.fullmatch(r"([vs])\[(\d+):(\d+)\]", tok)
    if m: return [(m.group(1), i) for i in range(int(m.group(2)), int(m.group(3)) + 1)]
    if tok == "vcc": return [("s", 106), ("s", 107)]
    if tok == "m0": return [("s", 124)]
    if tok == "exec": return [("s", 126), ("s", 127)]
    return []
class Ins:
    def __init__(self, text):
        self.text = text
        t = text.split(";")[0].strip()
        self.label = t.endswith(":") or t.startswith(".") or t == ""
        if self.label: return
        p = t.split(None, 1)
        self.op = op = p[0]
        rest = re.sub(r"(quad_perm|op_sel|op_sel_hi):\[[^\]]*\]", "", p[1] if len(p) > 1 else "")
        ops = [x.strip() for x in rest.split(",")]
        last = ops[-1].split()
        self.mods = last[1:] if last else []
        if last: ops[-1] = last[0]
        R = [regs(o) for o in ops]
        self.valu = op.startswith("v_"); self.mfma = op.startswith("v_mfma")
        self.vmem = op.startswith(("buffer_", "global_")); self.ds = op.startswith("ds_")
        self.dpp = any(m.startswith(("quad_perm", "row_")) for m in t.split())
        self.perm = op.startswith("v_permlane"); self.trans = op.startswith(TRANS)
        self.lds_dma = self.vmem and ("lds" in t.split() or "_lds_" in op)
        self.w = set(); self.r = set(); self.srcc = set(); self.sdata = set()
        flat = lambda a: set(x for y in a for x in y)
        if self.mfma:
            self.w = set(R[0]); self.ab = flat(R[1:3]); self.srcc = set(R[3]); self.r = self.ab | self.srcc
        elif self.perm:
            self.w = flat(R[:2]); self.r = flat(R[:2])
        elif self.valu:
            self.w = set(R[0]); self.r = flat(R[1:])
            if op.startswith(("v_fmac", "v_writelane")) or self.dpp: self.r |= set(R[0])
        elif self.vmem:
            if "store" in op: self.r = flat(R); self.sdata = set(R[0]) if op.startswith("buffer") else set(R[1])
            elif self.lds_dma: self.r = flat(R) | {("s", 124)}
            else: self.w = set(R[0]); self.r = flat(R[1:])
            if not ("x4" in op or "x3" in op): self.sdata = set()
        elif self.ds:
            if "write" in op: self.r = flat(R)
            else: self.w = set(R[0]); self.r = flat(R[1:])
        else:
            if op.startswith(("s_cmp", "s_waitcnt", "s_barrier", "s_nop", "s_branch", "s_cbranch", "s_endpgm", "s_sleep", "s_setprio", "s_bitcmp")): self.r = flat(R)
            else: self.w = set(R[0]); self.r = flat(R[1:])
        self.states = int(ops[0]) + 1 if op == "s_nop" else 1
def need(p, c):
    n = 0
    V = lambda s: set(x for x in s if x[0] == "v")
    S = lambda s: set(x for x in s if x[0] == "s")
    if p.mfma:
        if c.mfma:
            if p.w & c.ab: n = max(n, 8)
            if p.w & c.srcc and p.w != c.srcc: n = max(n, 6)
            if p.w & c.w and p.w != c.srcc: n = max(n, 8)
        elif (c.valu or c.vmem or c.ds) and p.w & (c.r | c.w): n = max(n, 8)
        if c.valu and not c.mfma and p.srcc & c.w: n = max(n, 3)
    elif p.valu:
        if V(p.w) & c.r:
            if c.mfma or c.dpp or c.perm: n = max(n, 2)
            if c.op.startswith(("v_readlane", "v_readfirstlane")): n = max(n, 1)
            if p.trans and c.valu: n = max(n, 1)
        if S(p.w) & c.r:
            if c.valu: n = max(n, 4 if "lane" in c.op else 2)
            if c.vmem: n = max(n, 5)
    elif p.sdata and p.sdata & c.w: n = max(n, 2)
    elif ("s", 124) in p.w and (c.lds_dma): n = max(n, 1)
    return n
class Asm:
    def __init__(self): self.L = []
    def __call__(self, s):
        for t in s.split("\n"):
            t = t.strip()
            if not t: continue
            c = Ins(t)
            if not c.label:
                d = 0; pad = 0
                for p in reversed(self.L):
                    if p.label: continue
                    if d >= 8: break
                    pad = max(pad, need(p, c) - d)
                    d += p.states
                if pad > 0: self.L.append(Ins("s_nop %d" % (pad - 1)))
            self.L.append(c)
    def text(self): return "\n".join(("" if i.label else "    ") + i.text for i in self.L)
```

```python
import sys
from asmlib import Asm
KN = "recurrent_scan__sliding_block_cached__dense_activation_relu__decode_kernel"
P = dict(NK0=2, NV0=1, PKV="nt", PW="nt", STAMP=0, SPIN=200000, WARM=0)
for a in sys.argv[1:]:
    k, v = a.split("=")
    P[k] = type(P[k])(v) if v != "def" else ""
NK0, NV0, PKV, PW, STAMP = P["NK0"], P["NV0"], P["PKV"], P["PW"], P["STAMP"]
LV, LK, LWO, LS = 0, 65536, 131072, 147456
LWQ, LW1, LW2 = LV + 32768, LV + 49152, LK + 49152
LXN = LS; LQ = LXN + 4352; LMX = LQ + 1280; LP = LMX + 64; LRS = LP + 2304 + 192; LRG = LRS + 4096
LDS_BYTES = LRG + 4096
assert LRS % 256 == 0 and LDS_BYTES <= 163840
QP, HP, ST, OP, SP, WSZ = 0x1000, 0x41000, 0x79000, 0x80000, 0x100000, 0x160000
STP = 0x200000
DPP = "row_mask:0xf bank_mask:0xf"
A = Asm()
nst = [0]
def stamp(name):
    if not STAMP: return
    i = nst[0]; nst[0] += 1
    A("s_memrealtime s[98:99]\ns_waitcnt lgkmcnt(0)\nv_writelane_b32 v127, s98, %d ; stamp %s" % (i, name))
    print("stamp", i, name, file=sys.stderr)
X, WQ, K, V, WO, WF, WS, OUT = ("s[%d:%d]" % (i, i + 3) for i in range(4, 36, 4))
sW, sHKV, sLO, sHI, sROLE, sE = "s52", "s53", "s55", "s56", "s57", "s60"
sT = ["s61", "s62", "s63", "s64"]
sKV, sW4K = "s58", "s59"
sM0, sM1, sM2, sM3, sM01 = "s[66:67]", "s[68:69]", "s[70:71]", "s[72:73]", "s[74:75]"
sF0, sF1 = "s76", "s77"
sSPIN = "s78"
vL, vN, vG, vU, vHB, vFF = "v1", "v2", "v3", "v4", "v5", "v6"
def vr(a, n): return "v[%d:%d]" % (a, a + n - 1)

def tile_dma(srd, voff, sbase, pitch, lds):
    A("s_add_u32 m0, %s, %d" % (sW4K, lds))
    for i in range(4):
        if i: A("s_add_u32 %s, %s, %d" % (sbase, sbase, 8 * pitch - 1024))
        A("buffer_load_dwordx4 %s, %s, %s offen offset:%d %s lds" % (voff, srd, sbase, 1024 * i, PW))
def kv_dma(srd, voffs, lds, a):
    A("s_add_u32 m0, %s, %d\ns_add_u32 s79, %s, %d" % (sW4K, lds + a * 16384, sKV, a * 16384))
    for i in range(4):
        A("buffer_load_dwordx4 %s, %s, s79 offen offset:%d %s lds" % (voffs[i % len(voffs)], srd, 1024 * i, PKV))
def tag(r):
    for e in range(4): A("v_bfi_b32 v%d, %s, %s, v%d" % (r + e, vFF, sT[e], r + e))
def untag(r, n, t):
    for e in range(n): A("v_xor_b32 v%d, %s, v%d" % (r + e, sT[e % 4], r + e))
    A("v_or3_b32 v%d, v%d, v%d, v%d" % (t, r, r + 1, r + 2))
    i = 3
    while i + 1 < n:
        A("v_or3_b32 v%d, v%d, v%d, v%d" % (t, t, r + i, r + i + 1)); i += 2
    A("v_bitop3_b32 v%d, v%d, v%d, %s bitop3:0xa8" % (t, t, r + i, vFF))
    A("v_cmp_ne_u32 vcc, 0, v%d" % t)
def retry(lbl_again, lbl_ok):
    A("s_cbranch_vccz %s\ns_add_u32 %s, %s, 1\ns_cmp_lt_u32 %s, %d\ns_cbranch_scc1 %s\n%s:" % (lbl_ok, sSPIN, sSPIN, sSPIN, P["SPIN"], lbl_again, lbl_ok))
def rscatter8(r):
    for e in range(4): A("v_permlane32_swap_b32 v%d, v%d" % (r + e, r + 4 + e))
    for e in range(4): A("v_add_f32 v%d, v%d, v%d" % (r + e, r + e, r + 4 + e))
    for e in range(2): A("v_permlane16_swap_b32 v%d, v%d" % (r + e, r + 2 + e))
    for e in range(2): A("v_add_f32 v%d, v%d, v%d" % (r + e, r + e, r + 2 + e))
def allred_g(op, r, t):
    A("v_mov_b32 v%d, v%d\nv_permlane16_swap_b32 v%d, v%d\n%s v%d, v%d, v%d" % (t, r, r, t, op, r, r, t))
    A("v_mov_b32 v%d, v%d\nv_permlane32_swap_b32 v%d, v%d\n%s v%d, v%d, v%d" % (t, r, r, t, op, r, r, t))
def allred64(r, t):
    for c in ("quad_perm:[1,0,3,2]", "quad_perm:[2,3,0,1]", "row_half_mirror", "row_mirror"):
        A("v_add_f32_dpp v%d, v%d, v%d %s %s" % (r, r, r, c, DPP))
    allred_g("v_add_f32", r, t)
def rbf(r):
    A("v_cvt_pk_bf16_f32 v%d, v%d, v%d\nv_and_b32 v%d, 0xffff0000, v%d" % (r, r, r, r, r))
def rbf2(d0, d1, a, b, t):
    A("v_cvt_pk_bf16_f32 v%d, v%d, v%d\nv_lshlrev_b32 v%d, 16, v%d\nv_and_b32 v%d, 0xffff0000, v%d" % (t, a, b, d0, t, d1, t))
def quad_b(dst, src):
    for i, r in enumerate((0, 2, 1, 3)):
        A("v_mov_b32_dpp v%d, v%d quad_perm:[%d,%d,%d,%d] %s" % (dst + i, src, r, r, r, r, DPP))
def mfma(d, a, b, c=None):
    A("v_mfma_f32_16x16x32_bf16 %s, %s, %s, %s" % (vr(d, 4), vr(a, 4), vr(b, 4), vr(d, 4) if c is None else c))

if STAMP: A("s_memrealtime s[96:97]")
A("s_load_dwordx16 s[36:51], s[0:1], 0\ns_load_dwordx2 s[28:29], s[0:1], 80\ns_load_dwordx2 s[32:33], s[0:1], 64")
A("s_cmp_ge_u32 s2, 256\ns_cbranch_scc1 L_end")
A(f"""
v_lshrrev_b32 v7, 6, v0
v_and_b32 {vL}, 63, v0
v_readfirstlane_b32 {sW}, v7
v_lshlrev_b32 v8, 4, v0                 ; x offset
v_lshrrev_b32 {vG}, 4, {vL}
v_and_b32 {vN}, 15, {vL}
s_and_b32 {sHKV}, s2, 7
s_bfe_u32 {sLO}, s2, 0x20003
s_lshr_b32 {sHI}, s2, 5
s_mov_b32 s6, 4096
s_mov_b32 s7, 0x20000
s_mov_b32 s10, 0x400000
s_mov_b32 s11, 0x20000
s_mov_b32 s14, 0x4000000
s_mov_b32 s15, 0x20000
s_mov_b32 s26, 1835008
s_mov_b32 s27, 0x20000
s_lshl_b32 {sW4K}, {sW}, 12
v_lshrrev_b32 v9, 3, {vL}
v_and_b32 v10, 7, {vL}
v_lshlrev_b32 v7, 1, {vG}
v_xor_b32 v10, v10, v7
v_lshlrev_b32 v10, 4, v10
v_lshl_add_u32 v11, v9, 13, v10
v_lshl_add_u32 v13, v9, 10, v10
v_mul_u32_u24 v12, 3584, v9
v_add_u32 v12, v12, v10                 ; w1 voffset
v_xor_b32 v14, {vN}, {vG}
v_lshlrev_b32 v14, 4, v14
v_lshl_add_u32 v14, {vG}, 8, v14        ; K voffset 0
v_xor_b32 v15, 64, v14
v_xor_b32 v16, 0x80, v14
v_xor_b32 v17, 0xc0, v14
s_lshl_b32 s80, {sLO}, 2
s_add_u32 s80, s80, {sW}
s_lshl_b32 s81, s80, 18
s_lshl_b32 s82, {sHKV}, 3
s_add_u32 s82, s82, {sHI}
s_lshl_b32 s82, s82, 7
s_add_u32 s81, s81, s82
s_lshl_b32 {sF0}, {sHI}, 3
s_add_u32 {sF0}, {sF0}, {sHKV}
s_mul_i32 s83, s80, 114688
s_lshl_b32 s82, {sF0}, 7
s_add_u32 s83, s83, s82                 ; w1 base
s_lshl_b32 {sKV}, {sLO}, 3
s_add_u32 {sKV}, {sKV}, {sHKV}
s_lshl_b32 {sKV}, {sKV}, 5
s_add_u32 {sKV}, {sKV}, {sHI}
s_lshl_b32 {sKV}, {sKV}, 16
s_add_u32 {sKV}, {sKV}, {sW4K}
s_add_u32 {sKV}, {sKV}, 0x180000
s_sub_u32 {sF1}, s2, 128
s_cmp_lt_u32 {sF1}, 112
s_cselect_b32 {sROLE}, 2, 0
s_lshr_b32 {sF1}, {sF1}, 3
s_cmp_lt_u32 {sF0}, 28
s_cselect_b32 {sROLE}, 1, {sROLE}
s_waitcnt lgkmcnt(0)
s_cselect_b64 s[24:25], s[48:49], s[50:51]
s_mov_b64 s[4:5], s[36:37]
s_mov_b64 s[8:9], s[42:43]
s_mov_b64 s[12:13], s[38:39]
buffer_load_dwordx4 v[20:23], v8, {X}, 0 offen
s_load_dword {sE}, s[28:29], 0
""")
tile_dma(WQ, "v11", "s81", 8192, LWQ)
A(f"s_cmp_eq_u32 {sROLE}, 1\ns_cbranch_scc0 L_now1")
tile_dma(WF, "v12", "s83", 3584, LW1)
A("L_now1:")
KO = ["v14", "v15", "v16", "v17"]; VO = ["v18", "v19"]
for a in range(NK0): kv_dma(K, KO, LK, a)
if STAMP: A("v_mov_b32 v127, 0\nv_writelane_b32 v127, s96, 63\ns_getreg_b32 s98, hwreg(HW_REG_XCC_ID)\nv_writelane_b32 v127, s98, 62")
stamp("issued0")
A(f"""
s_mov_b64 s[16:17], s[40:41]
s_mov_b32 s18, 0x4000000
s_mov_b32 s19, 0x20000
s_mov_b64 s[20:21], s[44:45]
s_mov_b32 s22, 0x400000
s_mov_b32 s23, 0x20000
s_mov_b32 s30, {0x400000 if STAMP else WSZ}
s_mov_b32 s31, 0x20000
s_mov_b32 s34, 4096
s_mov_b32 s35, 0x20000
s_mov_b32 s66, 0x11111111
s_mov_b32 s67, 0x11111111
s_lshl_b64 {sM1}, {sM0}, 1
s_lshl_b64 {sM2}, {sM0}, 2
s_lshl_b64 {sM3}, {sM0}, 3
s_or_b64 {sM01}, {sM0}, {sM1}
s_mov_b32 {sSPIN}, 0
v_and_b32 {vU}, 3, {vL}
v_bfe_u32 {vHB}, {vL}, 2, 2
v_mov_b32 {vFF}, 0xff
v_lshlrev_b32 v7, 1, {vG}
v_xor_b32 v18, {vN}, v7
v_lshlrev_b32 v18, 4, v18
v_lshl_add_u32 v18, {vG}, 8, v18        ; V voffset 0
v_xor_b32 v19, 0x80, v18
s_mul_i32 s80, {sW}, 1088
s_add_u32 s80, s80, {LXN}
v_lshl_add_u32 v24, {vL}, 4, s80
s_lshl_b32 s80, {sLO}, 8
s_add_u32 s80, s80, {LXN}
v_mul_u32_u24 v25, 1088, {vHB}
v_lshl_add_u32 v25, {vG}, 3, v25
v_add_u32 v25, s80, v25
v_lshl_add_u32 v7, {vG}, 2, {vHB}
v_bfe_u32 v9, v7, 1, 2
v_xor_b32 v9, {sW}, v9
v_lshlrev_b32 v9, 5, v9
v_lshl_add_u32 v9, v7, 7, v9
v_lshl_add_u32 v26, {vU}, 3, v9
v_and_b32 v9, 7, v7
s_lshl_b32 s80, {sW}, 1
v_xor_b32 v9, s80, v9
v_lshlrev_b32 v9, 5, v9
v_lshl_add_u32 v9, v7, 8, v9
v_lshl_add_u32 v27, {vU}, 3, v9
v_xor_b32 v28, 32, v27
v_lshlrev_b32 v29, 4, {vG}
v_lshl_add_u32 v29, {vHB}, 13, v29
v_lshlrev_b32 v30, 5, {vG}
v_lshl_add_u32 v30, {vHB}, 10, v30
s_lshl_b32 s84, {sHKV}, 4
s_add_u32 s84, s84, {sLO}
s_lshl_b32 s84, s84, 3
s_add_u32 s84, s84, {sHI}
s_lshl_b32 s84, s84, 2
s_add_u32 s84, s84, {sW}
s_lshl_b32 s84, s84, 6
s_add_u32 s84, s84, {QP}
s_lshl_b32 s85, {sF0}, 1
s_lshr_b32 s80, {sW}, 1
s_add_u32 s85, s85, s80
s_lshl_b32 s85, s85, 5
s_add_u32 s85, s85, {sLO}
s_lshl_b32 s85, s85, 3
s_and_b32 s80, {sW}, 1
s_add_u32 s85, s85, s80
s_lshl_b32 s85, s85, 4
s_add_u32 s85, s85, {HP}
v_lshlrev_b32 v31, 4, {vN}
v_lshl_add_u32 v31, {vG}, 11, v31
s_lshl_b32 s86, {sHKV}, 2
s_add_u32 s86, s86, {sLO}               ; 4*hkv+lo
s_lshl_b32 s87, s86, 4
s_add_u32 s87, s87, {sW}
s_lshl_b32 s87, s87, 9
s_add_u32 s87, s87, {QP}
s_lshl_b32 s88, s86, 2
s_add_u32 s88, s88, {sW}                ; (4*hkv+h)*4+w
s_lshl_b32 s89, s88, 8
s_add_u32 s89, s89, {sHI}
s_lshl_b32 s89, s89, 7
s_lshl_b32 s90, {sF1}, 2
s_add_u32 s90, s90, {sW}                ; 4*rb+w
s_lshl_b32 s91, s90, 8
s_add_u32 s91, s91, {sHKV}
s_lshl_b32 s91, s91, 7
s_waitcnt lgkmcnt(0)
s_add_u32 {sE}, {sE}, 0x9d5b3701
s_and_b32 {sT[0]}, {sE}, 0xff
s_bfe_u32 {sT[1]}, {sE}, 0x80008
s_bfe_u32 {sT[2]}, {sE}, 0x80010
s_lshr_b32 {sT[3]}, {sE}, 24
""")
A("s_waitcnt vmcnt(%d)" % (4 + 4 * NK0))
stamp("x")
for i in range(4): A("v_lshlrev_b32 v%d, 16, v%d\nv_and_b32 v%d, 0xffff0000, v%d" % (32 + 2 * i, 20 + i, 33 + 2 * i, 20 + i))
A("v_add_f32 v40, v32, v33\nv_add_f32 v41, v34, v35\nv_add_f32 v42, v36, v37\nv_add_f32 v43, v38, v39\nv_add_f32 v40, v40, v41\nv_add_f32 v42, v42, v43\nv_add_f32 v40, v40, v42")
allred64(40, 41)
A("v_mul_f32 v40, 0x3b000000, v40")
for i in range(8): A("v_sub_f32 v%d, v%d, v40" % (44 + i, 32 + i))
A("v_mul_f32 v42, v44, v44\nv_mul_f32 v43, v45, v45")
for i in range(2, 8): A("v_fmac_f32 v%d, v%d, v%d" % (42 + i % 2, 44 + i, 44 + i))
A("v_add_f32 v42, v42, v43")
rbf(40)
for i in range(8): A("v_sub_f32 v%d, v%d, v40" % (32 + i, 32 + i))
allred64(42, 41)
for i in range(4): rbf2(32 + 2 * i, 33 + 2 * i, 32 + 2 * i, 33 + 2 * i, 44 + i)
A("v_mul_f32 v42, 0x3b000000, v42"); rbf(42)
A("v_add_f32 v42, 0x3727c5ac, v42"); rbf(42)
A("v_sqrt_f32 v42, v42"); rbf(42)
A("v_rcp_f32 v42, v42")
for i in range(8): A("v_mul_f32 v%d, v%d, v42" % (32 + i, 32 + i))
for i in range(4): A("v_cvt_pk_bf16_f32 v%d, v%d, v%d" % (20 + i, 32 + 2 * i, 33 + 2 * i))
A("ds_write_b128 v24, v[20:23]")
A("s_waitcnt vmcnt(%d) lgkmcnt(0)\ns_barrier" % (4 * NK0))
stamp("wq")
for t in range(4): A("ds_read2_b64 %s, v25 offset0:%d offset1:%d" % (vr(32 + 4 * t, 4), 8 * t, 8 * t + 4))
def proj(lds, voff, soff):
    for t in range(4):
        for h in range(2): A("ds_read_b64_tr_b16 %s, v26 offset:%d" % (vr(48 + 4 * t + 2 * h, 2), lds + t * 4096 + h * 2048))
    for t in range(4):
        A("s_waitcnt lgkmcnt(%d)" % (6 - 2 * t)); mfma(64, 48 + 4 * t, 32 + 4 * t, "0" if t == 0 else None)
    tag(64)
    A(f"s_mov_b64 exec, {sM0}\nbuffer_store_dwordx4 v[64:67], {voff}, {WS}, {soff} offen sc1\ns_mov_b64 exec, -1")
proj(LWQ, "v29", "s84")
A(f"s_cmp_eq_u32 {sROLE}, 1\ns_cbranch_scc0 L_noh")
proj(LW1, "v30", "s85")
A("L_noh:\ns_barrier")
stamp("qpub")
def qgather():
    for i in range(2): A(f"buffer_load_dwordx4 {vr(32 + 4 * i, 4)}, v31, {WS}, s87 offen offset:{256 * i} sc1")
for a in range(NK0, 4): kv_dma(K, KO, LK, a)
for a in range(NV0): kv_dma(V, VO, LV, a)
qgather()
stamp("qg_issued")
for a in range(NV0, 4): kv_dma(V, VO, LV, a)
tile_dma(WO, "v13", "s89", 1024, LWO)
A(f"""
v_xor_b32 v7, {vG}, {vN}
v_lshlrev_b32 v7, 4, v7
v_lshl_add_u32 v7, {vN}, 8, v7
s_add_u32 s80, {sW4K}, {LK}
v_add_u32 v14, s80, v7
v_xor_b32 v15, 64, v14
v_xor_b32 v16, 0x80, v14
v_xor_b32 v17, 0xc0, v14
v_lshrrev_b32 v7, 1, {vG}
v_and_b32 v9, 1, {vG}
v_lshlrev_b32 v10, 7, v7
v_lshl_add_u32 v10, {vN}, 3, v10
v_lshl_add_u32 v10, v9, 2, v10
s_mul_i32 s80, {sW}, 320
s_add_u32 s80, s80, {LQ}
v_add_u32 v24, s80, v10
v_mul_u32_u24 v25, 320, {vHB}
v_lshl_add_u32 v25, {vG}, 4, v25
v_add_u32 v25, {LQ}, v25
v_and_b32 v10, 2, {vHB}
v_add_u32 v10, v10, v9
v_lshl_add_u32 v7, v7, 2, v10
v_and_b32 v9, 1, {vHB}
v_lshl_add_u32 v7, v7, 1, v9            ; row
v_lshlrev_b32 v10, 5, v10
v_lshl_add_u32 v10, v7, 7, v10
v_lshl_add_u32 v10, {vU}, 3, v10
s_add_u32 s80, {sW4K}, {LW2}
v_add_u32 v20, s80, v10
v_xor_b32 v21, 32, v20
v_xor_b32 v22, 64, v20
v_xor_b32 v23, 0x60, v20
v_lshlrev_b32 v8, 4, {vHB}
v_add_u32 v8, {LMX}, v8
s_lshl_b32 s80, {sW}, 2
v_add_u32 v9, s80, v8
v_mul_u32_u24 v11, 576, {vHB}
v_lshl_add_u32 v11, {vG}, 4, v11
v_add_u32 v11, {LP}, v11                ; P read
s_lshr_b32 s80, {sW}, 1
s_lshl_b32 s80, s80, 3
s_and_b32 s81, {sW}, 1
s_add_u32 s80, s80, s81
s_lshl_b32 s80, s80, 3
v_lshl_add_u32 v10, {vU}, 7, v11
v_add_u32 v10, s80, v10                 ; P write
v_lshlrev_b32 v12, 4, {vU}
v_lshl_add_u32 v29, {vG}, 5, v12
v_lshl_add_u32 v29, {vHB}, 14, v29      ; O publish
v_lshl_add_u32 v12, {vG}, 7, v12
v_lshl_add_u32 v12, {vHB}, 10, v12      ; O / h gather
v_and_b32 v7, 1, {vU}
v_lshl_add_u32 v7, v7, 2, {vG}
v_lshl_add_u32 v7, {vHB}, 3, v7
v_lshlrev_b32 v30, 4, v7
v_mov_b32 v26, 0
s_lshl_b32 s80, {sLO}, 3
s_add_u32 s80, s80, {sHI}               ; 8*b+s
s_lshl_b32 s81, {sHKV}, 2
s_add_u32 s81, s81, {sW}
s_lshl_b32 s81, s81, 5
s_add_u32 s81, s81, s80
s_lshl_b32 s81, s81, 4
s_add_u32 s84, s81, {ST}
s_lshl_b32 s85, {sHKV}, 16
s_add_u32 s85, s85, {sW4K}
s_lshl_b32 s80, s80, 7
s_add_u32 s85, s85, s80
s_add_u32 s85, s85, {OP}                ; O publish
s_lshl_b32 s92, s86, 9
s_add_u32 s92, s92, {ST}
s_lshl_b32 s88, s88, 12
s_add_u32 s88, s88, {OP}                ; O gather
s_lshl_b32 s90, s90, 12
s_add_u32 s90, s90, {HP}                ; h gather
""")
stamp("allissued")
A("s_waitcnt vmcnt(%d)\ns_branch L_qchk\nL_qagain:" % (4 * (4 - NV0) + 4))
qgather()
A("s_waitcnt vmcnt(0)\nL_qchk:")
untag(32, 8, 40)
retry("L_qagain", "L_qok")
stamp("q_ok")
rscatter8(32)
A("v_cvt_pk_bf16_f32 v32, v32, v33\nds_write_b32 v24, v32")
for a in range(4):
    for j in range(4): A("ds_read_b128 %s, v%d offset:%d" % (vr(64 + 16 * a + 4 * j, 4), 14 + j, 16384 * a)) if a < 3 else None
A("s_waitcnt lgkmcnt(12)\ns_barrier")
for j in range(3): A("ds_read_b128 %s, v25 offset:%d" % (vr(32 + 4 * j, 4), 64 * j))
A("s_waitcnt lgkmcnt(8)\nds_read_b128 v[44:47], v25 offset:192")
for j in range(4): A("ds_read_b128 %s, v%d offset:%d" % (vr(112 + 4 * j, 4) if j < 3 else "v[128:131]", 14 + j, 16384 * 3))
A("s_waitcnt lgkmcnt(4)")
for a in range(4):
    if a == 3: A("s_waitcnt lgkmcnt(0)")
    for j in range(4): mfma(48 + 4 * a, (64 + 16 * a + 4 * j) if (a, j) != (3, 3) else 128, 32 + 4 * j, "0" if j == 0 else None)
def hgather():
    for i in range(2): A(f"buffer_load_dwordx4 {vr(132 + 4 * i, 4)}, v12, {WS}, s90 offen offset:{64 * i} sc1")
A(f"s_cmp_eq_u32 {sROLE}, 2\ns_cbranch_scc0 L_now2")
tile_dma(WF, "v13", "s91", 1024, LW2)
hgather()
A("L_now2:\ns_nop 4")
for a, m in ((1, sM1), (2, sM2), (3, sM3)):
    for e in range(4): A("v_cndmask_b32 v%d, v%d, v%d, %s" % (48 + e, 48 + e, 48 + 4 * a + e, m))
rbf2(48, 49, 48, 49, 52); rbf2(50, 51, 50, 51, 53)
for e in range(4): A("v_mul_f32 v%d, 0x3db504f3, v%d" % (48 + e, 48 + e))
rbf2(48, 49, 48, 49, 52); rbf2(50, 51, 50, 51, 53)
A("v_max_f32 v52, v48, v49\nv_max3_f32 v52, v52, v50, v51")
for c in ("quad_perm:[1,0,3,2]", "quad_perm:[2,3,0,1]"): A("v_max_f32_dpp v52, v52, v52 %s %s" % (c, DPP))
allred_g("v_max_f32", 52, 53)
A("s_mov_b64 exec, 0x1111\nds_write_b32 v9, v52\ns_mov_b64 exec, -1\ns_waitcnt lgkmcnt(0)\ns_barrier")
A("ds_read_b128 v[52:55], v8\nv_mov_b32 v60, 0x3f803f80\nv_mov_b32 v61, v60\nv_mov_b32 v62, v60\nv_mov_b32 v63, v60\ns_waitcnt lgkmcnt(0)")
A("v_max_f32 v52, v52, v53\nv_max3_f32 v56, v52, v54, v55")
for e in range(4): A("v_sub_f32 v%d, v%d, v56" % (48 + e, 48 + e))
for e in range(4): A("v_mul_f32 v%d, 0x3fb8aa3b, v%d" % (48 + e, 48 + e))
for e in range(4): A("v_exp_f32 v%d, v%d" % (48 + e, 48 + e))
A("v_cvt_pk_bf16_f32 v48, v48, v49\nv_cvt_pk_bf16_f32 v49, v50, v51\nds_write_b64 v10, v[48:49]")
def vwait(n, lbl):
    A(f"s_cmp_eq_u32 {sROLE}, 2\ns_cbranch_scc1 {lbl}\ns_waitcnt vmcnt({n})\n{lbl}:\ns_waitcnt vmcnt({n + 6}) lgkmcnt(0)\ns_barrier")
stamp("p_done")
vwait(8, "L_vw1")
stamp("v012")
for t in range(8): A("ds_read_b128 %s, v11 offset:%d" % (vr(64 + 4 * t, 4), 64 * t))
def vreads(t, r):
    for mt in range(2):
        for h in range(2): A("ds_read_b64_tr_b16 %s, v%d offset:%d" % (vr(r + 4 * mt + 2 * h, 2), 27 + mt, t * 8192 + h * 4096))
vreads(0, 96)
A("s_waitcnt lgkmcnt(4)")
vreads(1, 104)
vreads(2, 112)
for t in range(8): mfma(52, 60, 64 + 4 * t, "0" if t == 0 else None)
R3 = (96, 104, 112)
for t in range(6):
    A("s_waitcnt lgkmcnt(%d)" % (8 if t < 4 else 4 * (5 - t)))
    for mt in range(2): mfma(40 + 4 * mt, R3[t % 3] + 4 * mt, 64 + 4 * t, "0" if t == 0 else None)
    if t + 3 < 6: vreads(t + 3, R3[t % 3])
    if t == 1:
        A(f"v_mov_b32 v57, v52\nv_mov_b32 v58, {sE}\nv_mov_b32 v59, {sE}\ns_lshl_b32 s80, {sW}, 2\ns_lshl_b64 exec, 1, s80")
        A(f"buffer_store_dwordx4 v[56:59], v26, {WS}, s84 offen sc1\ns_mov_b64 exec, -1")
vwait(5, "L_vw2")
stamp("v3")
vreads(6, 96); vreads(7, 104)
for t in (6, 7):
    A("s_waitcnt lgkmcnt(%d)" % (4 * (7 - t)))
    for mt in range(2): mfma(40 + 4 * mt, R3[t - 6] + 4 * mt, 64 + 4 * t)
for e in range(4): A("v_cndmask_b32 v%d, v%d, v%d, %s" % (40 + e, 40 + e, 44 + e, sM1))
tag(40)
A(f"s_mov_b64 exec, {sM01}\nbuffer_store_dwordx4 v[40:43], v29, {WS}, s85 offen sc1\ns_mov_b64 exec, -1")
stamp("o_pub")
def ogather():
    A(f"buffer_load_dwordx4 v[56:59], v30, {WS}, s92 offen sc1")
    for sh in range(2):
        for i in range(2): A(f"buffer_load_dwordx4 {vr(64 + 8 * sh + 4 * i, 4)}, v12, {WS}, s88 offen offset:{512 * sh + 64 * i} sc1")
ogather()
A(f"""
v_lshl_add_u32 v7, {vHB}, 2, {vU}
v_lshl_add_u32 v7, v7, 2, {vG}
v_lshlrev_b32 v7, 4, v7
s_lshl_b32 s80, {sW}, 10
s_add_u32 s80, s80, {LRS}
v_add_u32 v24, s80, v7
v_lshlrev_b32 v31, 4, {vL}
s_add_u32 s80, {sW4K}, {LRS}
v_add_u32 v25, s80, v31
v_and_b32 v7, 7, {vN}
v_lshlrev_b32 v9, 4, v7
v_lshrrev_b32 v10, 3, {vL}
v_and_b32 v10, 1, v10
v_lshl_add_u32 v10, {vG}, 4, v10
v_mul_u32_u24 v10, 6144, v10
v_add_u32 v29, v10, v9
v_lshl_add_u32 v7, v7, 2, {vG}
v_lshlrev_b32 v8, 1, v7
s_mul_i32 s84, {sHI}, 12288
s_lshl_b32 s80, s86, 7
s_add_u32 s84, s84, s80
s_mul_i32 s85, {sHKV}, 12288
s_lshl_b32 s80, {sF1}, 7
s_add_u32 s85, s85, s80
s_add_u32 s85, s85, 4096
s_cmp_eq_u32 {sW}, 0
s_cselect_b32 s84, s84, s85
s_add_u32 s84, s84, {SP}
s_waitcnt vmcnt(7)
""")
def wreads(r, off):
    for mt in range(4):
        for h in range(2): A("ds_read_b64_tr_b16 %s, v%d offset:%d" % (vr(r + 4 * mt + 2 * h, 2), 20 + mt, off + h * 2048))
def wstage(a, b, off):
    for mt in range(4): mfma(32 + 4 * mt, a + 4 * mt, b, "0")
    for mt, m in enumerate((sM0, sM1, sM2, sM3)):
        A("s_mov_b64 exec, %s\nds_write_b128 v24, %s offset:%d" % (m, vr(32 + 4 * mt, 4), off))
    A("s_mov_b64 exec, -1")
wreads(96, LWO - LW2)
A(f"s_cmp_eq_u32 {sROLE}, 2\ns_cbranch_scc0 L_noffn")
wreads(80, 0)
A("s_branch L_hchk\nL_hagain:")
hgather()
A("s_waitcnt vmcnt(0)\nL_hchk:")
untag(132, 8, 140)
retry("L_hagain", "L_hok")
rscatter8(132)
A("v_max_f32 v132, 0, v132\nv_max_f32 v133, 0, v133\nv_cvt_pk_bf16_f32 v132, v132, v133")
quad_b(136, 132)
A("s_waitcnt lgkmcnt(0)")
wstage(80, 136, 4096)
A("L_noffn:\ns_branch L_ow\nL_oagain:")
ogather()
A("L_ow:\ns_waitcnt vmcnt(4)")
A(f"v_max_f32_dpp v60, v56, v56 quad_perm:[1,0,3,2] {DPP}")
A(f"v_xor_b32 v58, {sE}, v58\nv_xor_b32 v59, {sE}, v59")
allred_g("v_max_f32", 60, 61)
A("v_sub_f32 v60, v56, v60\nv_mul_f32 v60, 0x3fb8aa3b, v60\nv_exp_f32 v60, v60\nv_or_b32 v58, v58, v59\nv_mul_f32 v61, v60, v57")
A("v_cmp_ne_u32 s[80:81], 0, v58")
A(f"v_add_f32_dpp v61, v61, v61 quad_perm:[1,0,3,2] {DPP}")
allred_g("v_add_f32", 61, 62)
A("v_rcp_f32 v61, v61\nv_mul_f32 v60, v60, v61")
A(f"v_mov_b32_dpp v62, v60 quad_perm:[0,0,0,0] {DPP}\nv_mov_b32_dpp v63, v60 quad_perm:[1,1,1,1] {DPP}")
A("s_waitcnt vmcnt(0)")
untag(64, 16, 61)
A("s_or_b64 vcc, vcc, s[80:81]")
retry("L_oagain", "L_ook")
stamp("o_ok")
for e in range(8): A("v_mul_f32 v%d, v%d, v62" % (64 + e, 64 + e))
for e in range(8): A("v_fmac_f32 v%d, v%d, v63" % (64 + e, 72 + e))
rscatter8(64)
A("v_cvt_pk_bf16_f32 v64, v64, v65")
quad_b(68, 64)
A("s_waitcnt lgkmcnt(0)")
wstage(96, 68, 0)
A("s_waitcnt lgkmcnt(0)\ns_barrier")
A(f"s_cmp_ge_u32 {sW}, 2\ns_cbranch_scc1 L_final\ns_lshl_b32 s80, {sW}, 1\ns_andn2_b32 s80, s80, {sROLE}\ns_cbranch_scc1 L_done")
for i in range(4): A("ds_read_b128 %s, v25 offset:%d" % (vr(32 + 4 * i, 4), 1024 * i))
A("s_waitcnt lgkmcnt(2)")
for e in range(4): A("v_add_f32 v%d, v%d, v%d" % (32 + e, 32 + e, 36 + e))
A("s_waitcnt lgkmcnt(0)")
for e in range(4): A("v_add_f32 v%d, v%d, v%d" % (40 + e, 40 + e, 44 + e))
for e in range(4): A("v_add_f32 v%d, v%d, v%d" % (32 + e, 32 + e, 40 + e))
tag(32)
A(f"buffer_store_dwordx4 v[32:35], v29, {WS}, s84 offen sc1")
stamp("s_pub")
A("s_branch L_done")
A(f"L_final:\ns_cmp_eq_u32 {sW}, 2\ns_cbranch_scc0 L_done\ns_sub_u32 s82, s2, 192\ns_cbranch_scc1 L_done")
A(f"s_mul_i32 s84, s82, 6144\ns_add_u32 s84, s84, {SP}\ns_add_u32 s85, s84, 4096\ns_lshl_b32 s83, s82, 6")
A(f"buffer_load_ushort v60, v8, {X}, s83 offen")
A("L_fagain:")
for i in range(4): A(f"buffer_load_dwordx4 {vr(32 + 4 * i, 4)}, v31, {WS}, s84 offen offset:{1024 * i} sc1")
A(f"buffer_load_dwordx4 v[48:51], v31, {WS}, s85 offen sc1")
for e in range(4): A("v_mov_b32 v%d, %s" % (52 + e, sT[e]))
A(f"s_mov_b32 exec_hi, 0xffff\nbuffer_load_dwordx4 v[52:55], v31, {WS}, s85 offen offset:1024 sc1\ns_mov_b32 exec_hi, -1")
A("s_waitcnt vmcnt(0)")
untag(32, 24, 61)
retry("L_fagain", "L_fok")
stamp("f_ok")
for e in range(4): A("v_add_f32 v%d, v%d, v%d" % (48 + e, 48 + e, 52 + e))
for e in range(8): A("v_add_f32 v%d, v%d, v%d" % (32 + e, 32 + e, 40 + e))
for e in range(4): A("v_add_f32 v%d, v%d, v%d" % (32 + e, 32 + e, 36 + e))
for r in (48, 32):
    for e in range(2): A("v_permlane32_swap_b32 v%d, v%d" % (r + e, r + 2 + e))
for r in (48, 32):
    for e in range(2): A("v_add_f32 v%d, v%d, v%d" % (r + e, r + e, r + 2 + e))
for r in (48, 32): A("v_permlane16_swap_b32 v%d, v%d" % (r, r + 1))
for r in (48, 32): A("v_add_f32 v%d, v%d, v%d" % (r, r, r + 1))
A("v_lshlrev_b32 v60, 16, v60")
for r in (48, 32): A("v_add_f32_dpp v%d, v%d, v%d row_ror:8 %s" % (r, r, r, DPP))
rbf2(48, 32, 48, 32, 33)
A("v_mul_f32 v49, 0xbfb8aa3b, v48\nv_exp_f32 v49, v49\nv_add_f32 v49, 1.0, v49\nv_rcp_f32 v49, v49\nv_mul_f32 v48, v48, v49")
rbf(48)
A("v_mul_f32 v32, v32, v48"); rbf(32)
A("v_add_f32 v32, v60, v32\nv_cvt_pk_bf16_f32 v32, v32, v32")
A(f"s_mov_b32 exec_lo, 0x00ff00ff\ns_mov_b32 exec_hi, 0x00ff00ff\nbuffer_store_short v32, v8, {OUT}, s83 offen")
A(f"s_cmp_eq_u32 s82, 0\ns_cbranch_scc0 L_done\nv_mov_b32 v33, {sE}\ns_mov_b64 exec, 1\nbuffer_store_dword v33, v26, {WS}, 0 offen")
A("L_done:")
if STAMP:
    A("s_mov_b64 exec, -1")
    stamp("end")
    A(f"v_writelane_b32 v127, {sSPIN}, 61")
    A(f"s_lshl_b32 s80, s2, 10\ns_add_u32 s80, s80, {STP}\nv_lshlrev_b32 v7, 2, v0\nbuffer_store_dword v127, v7, {WS}, s80 offen")
A("L_end:\ns_endpgm")
hdr = open("recurrent_scan__sliding_block_cached__dense_activation_relu__decode.s.ref").read().split("; Override launch")[0]
print(hdr + "; @launch grid=(256,1,1) block=(256,1,1) lds=%d" % LDS_BYTES)
print('.amdgcn_target "amdgcn-amd-amdhsa--gfx950"\n.text\n.globl %s\n.p2align 8\n.type %s,@function\n%s:' % (KN, KN, KN))
print(A.text())
print('.section .rodata,"a"\n.p2align 6\n.amdhsa_kernel %s\n  .amdhsa_next_free_vgpr 144\n  .amdhsa_next_free_sgpr 102\n  .amdhsa_accum_offset 144\n  .amdhsa_group_segment_fixed_size 0\n  .amdhsa_kernarg_size 88\n  .amdhsa_user_sgpr_count 2\n  .amdhsa_user_sgpr_kernarg_segment_ptr 1\n  .amdhsa_system_sgpr_workgroup_id_x 1\n.end_amdhsa_kernel' % KN)
```

```python
import sys
from asmlib import Asm
KN = "recurrent_scan__sliding_block_cached__dense_activation_relu__decode_kernel"
P = dict(NK0=2, NV0=1, PKV="nt", PW="nt", STAMP=0, SPIN=200000, WARM=0, DIAG="")
for a in sys.argv[1:]:
    k, v = a.split("=")
    P[k] = type(P[k])(v) if v != "def" else ""
NK0, NV0, PKV, PW, STAMP = P["NK0"], P["NV0"], P["PKV"], P["PW"], P["STAMP"]
LV, LK, LWO, LS = 0, 65536, 131072, 147456
LWQ, LW1, LW2 = LV + 32768, LV + 49152, LK + 49152
LXN = LS; LQ = LXN + 4352; LMX = LQ + 1280; LP = LMX + 64; LRS = LP + 2304 + 192; LRG = LRS + 4096
LDS_BYTES = LRG + 4096
assert LRS % 256 == 0 and LDS_BYTES <= 163840
QP, HP, ST, OP, SP, WSZ = 0x1000, 0x41000, 0x79000, 0x80000, 0x100000, 0x160000
STP = 0x200000
DPP = "row_mask:0xf bank_mask:0xf"
A = Asm()
nst = [0]
def stamp(name):
    if P["DIAG"] == name: A("s_memrealtime s[94:95]\ns_waitcnt lgkmcnt(0)")
    if not STAMP: return
    i = nst[0]; nst[0] += 1
    A("s_memrealtime s[98:99]\ns_waitcnt lgkmcnt(0)\nv_writelane_b32 v127, s98, %d ; stamp %s" % (i, name))
    print("stamp", i, name, file=sys.stderr)
X, WQ, K, V, WO, WF, WS, OUT = ("s[%d:%d]" % (i, i + 3) for i in range(4, 36, 4))
sW, sHKV, sLO, sHI, sROLE, sE = "s52", "s53", "s55", "s56", "s57", "s60"
sT = ["s61", "s62", "s63", "s64"]
sKV, sW4K = "s58", "s59"
sM0, sM1, sM2, sM3, sM01 = "s[66:67]", "s[68:69]", "s[70:71]", "s[72:73]", "s[74:75]"
sF0, sF1 = "s76", "s77"
sSPIN = "s78"
vL, vN, vG, vU, vHB, vFF = "v1", "v2", "v3", "v4", "v5", "v6"
def vr(a, n): return "v[%d:%d]" % (a, a + n - 1)

def tile_dma(srd, voff, sbase, pitch, lds):
    A("s_add_u32 m0, %s, %d" % (sW4K, lds))
    for i in range(4):
        if i: A("s_add_u32 %s, %s, %d" % (sbase, sbase, 8 * pitch - 1024))
        A("buffer_load_dwordx4 %s, %s, %s offen offset:%d %s lds" % (voff, srd, sbase, 1024 * i, PW))
def kv_dma(srd, voffs, lds, a):
    A("s_add_u32 m0, %s, %d\ns_add_u32 s79, %s, %d" % (sW4K, lds + a * 16384, sKV, a * 16384))
    for i in range(4):
        A("buffer_load_dwordx4 %s, %s, s79 offen offset:%d %s lds" % (voffs[i % len(voffs)], srd, 1024 * i, PKV))
def tag(r):
    for e in range(4): A("v_bfi_b32 v%d, %s, %s, v%d" % (r + e, vFF, sT[e], r + e))
def untag(r, n, t):
    for e in range(n): A("v_xor_b32 v%d, %s, v%d" % (r + e, sT[e % 4], r + e))
    A("v_or3_b32 v%d, v%d, v%d, v%d" % (t, r, r + 1, r + 2))
    i = 3
    while i + 1 < n:
        A("v_or3_b32 v%d, v%d, v%d, v%d" % (t, t, r + i, r + i + 1)); i += 2
    A("v_bitop3_b32 v%d, v%d, v%d, %s bitop3:0xa8" % (t, t, r + i, vFF))
    A("v_cmp_ne_u32 vcc, 0, v%d" % t)
def retry(lbl_again, lbl_ok):
    A("s_cbranch_vccz %s\ns_add_u32 %s, %s, 1\ns_cmp_lt_u32 %s, %d\ns_cbranch_scc1 %s\n%s:" % (lbl_ok, sSPIN, sSPIN, sSPIN, P["SPIN"], lbl_again, lbl_ok))
def rscatter8(r):
    for e in range(4): A("v_permlane32_swap_b32 v%d, v%d" % (r + e, r + 4 + e))
    for e in range(4): A("v_add_f32 v%d, v%d, v%d" % (r + e, r + e, r + 4 + e))
    for e in range(2): A("v_permlane16_swap_b32 v%d, v%d" % (r + e, r + 2 + e))
    for e in range(2): A("v_add_f32 v%d, v%d, v%d" % (r + e, r + e, r + 2 + e))
def allred_g(op, r, t):
    A("v_mov_b32 v%d, v%d\nv_permlane16_swap_b32 v%d, v%d\n%s v%d, v%d, v%d" % (t, r, r, t, op, r, r, t))
    A("v_mov_b32 v%d, v%d\nv_permlane32_swap_b32 v%d, v%d\n%s v%d, v%d, v%d" % (t, r, r, t, op, r, r, t))
def allred64(r, t):
    for c in ("quad_perm:[1,0,3,2]", "quad_perm:[2,3,0,1]", "row_half_mirror", "row_mirror"):
        A("v_add_f32_dpp v%d, v%d, v%d %s %s" % (r, r, r, c, DPP))
    allred_g("v_add_f32", r, t)
def rbf(r):
    A("v_cvt_pk_bf16_f32 v%d, v%d, v%d\nv_and_b32 v%d, 0xffff0000, v%d" % (r, r, r, r, r))
def rbf2(d0, d1, a, b, t):
    A("v_cvt_pk_bf16_f32 v%d, v%d, v%d\nv_lshlrev_b32 v%d, 16, v%d\nv_and_b32 v%d, 0xffff0000, v%d" % (t, a, b, d0, t, d1, t))
def quad_b(dst, src):
    for i, r in enumerate((0, 2, 1, 3)):
        A("v_mov_b32_dpp v%d, v%d quad_perm:[%d,%d,%d,%d] %s" % (dst + i, src, r, r, r, r, DPP))
def mfma(d, a, b, c=None):
    A("v_mfma_f32_16x16x32_bf16 %s, %s, %s, %s" % (vr(d, 4), vr(a, 4), vr(b, 4), vr(d, 4) if c is None else c))

if STAMP or P["DIAG"]: A("s_memrealtime s[96:97]\ns_memrealtime s[94:95]")
A("s_load_dwordx16 s[36:51], s[0:1], 0\ns_load_dwordx2 s[28:29], s[0:1], 80\ns_load_dwordx2 s[32:33], s[0:1], 64")
A("s_cmp_ge_u32 s2, 256\ns_cbranch_scc1 L_end")
A(f"""
v_lshrrev_b32 v7, 6, v0
v_and_b32 {vL}, 63, v0
v_readfirstlane_b32 {sW}, v7
v_lshlrev_b32 v8, 4, v0                 ; x offset
v_lshrrev_b32 {vG}, 4, {vL}
v_and_b32 {vN}, 15, {vL}
s_and_b32 {sHKV}, s2, 7
s_bfe_u32 {sLO}, s2, 0x20003
s_lshr_b32 {sHI}, s2, 5
s_mov_b32 s6, 4096
s_mov_b32 s7, 0x20000
s_mov_b32 s10, 0x400000
s_mov_b32 s11, 0x20000
s_mov_b32 s14, 0x4000000
s_mov_b32 s15, 0x20000
s_mov_b32 s26, 1835008
s_mov_b32 s27, 0x20000
s_lshl_b32 {sW4K}, {sW}, 12
v_lshrrev_b32 v9, 3, {vL}
v_and_b32 v10, 7, {vL}
v_lshlrev_b32 v7, 1, {vG}
v_xor_b32 v10, v10, v7
v_lshlrev_b32 v10, 4, v10
v_lshl_add_u32 v11, v9, 13, v10
v_lshl_add_u32 v13, v9, 10, v10
v_mul_u32_u24 v12, 3584, v9
v_add_u32 v12, v12, v10                 ; w1 voffset
v_xor_b32 v14, {vN}, {vG}
v_lshlrev_b32 v14, 4, v14
v_lshl_add_u32 v14, {vG}, 8, v14        ; K voffset 0
v_xor_b32 v15, 64, v14
v_xor_b32 v16, 0x80, v14
v_xor_b32 v17, 0xc0, v14
s_lshl_b32 s80, {sLO}, 2
s_add_u32 s80, s80, {sW}
s_lshl_b32 s81, s80, 18
s_lshl_b32 s82, {sHKV}, 3
s_add_u32 s82, s82, {sHI}
s_lshl_b32 s82, s82, 7
s_add_u32 s81, s81, s82
s_lshl_b32 {sF0}, {sHI}, 3
s_add_u32 {sF0}, {sF0}, {sHKV}
s_mul_i32 s83, s80, 114688
s_lshl_b32 s82, {sF0}, 7
s_add_u32 s83, s83, s82                 ; w1 base
s_lshl_b32 {sKV}, {sLO}, 3
s_add_u32 {sKV}, {sKV}, {sHKV}
s_lshl_b32 {sKV}, {sKV}, 5
s_add_u32 {sKV}, {sKV}, {sHI}
s_lshl_b32 {sKV}, {sKV}, 16
s_add_u32 {sKV}, {sKV}, {sW4K}
s_add_u32 {sKV}, {sKV}, 0x180000
s_sub_u32 {sF1}, s2, 128
s_cmp_lt_u32 {sF1}, 112
s_cselect_b32 {sROLE}, 2, 0
s_lshr_b32 {sF1}, {sF1}, 3
s_cmp_lt_u32 {sF0}, 28
s_cselect_b32 {sROLE}, 1, {sROLE}
s_waitcnt lgkmcnt(0)
s_cselect_b64 s[24:25], s[48:49], s[50:51]
s_mov_b64 s[4:5], s[36:37]
s_mov_b64 s[8:9], s[42:43]
s_mov_b64 s[12:13], s[38:39]
buffer_load_dwordx4 v[20:23], v8, {X}, 0 offen
s_load_dword {sE}, s[28:29], 0
""")
tile_dma(WQ, "v11", "s81", 8192, LWQ)
A(f"s_cmp_eq_u32 {sROLE}, 1\ns_cbranch_scc0 L_now1")
tile_dma(WF, "v12", "s83", 3584, LW1)
A("L_now1:")
KO = ["v14", "v15", "v16", "v17"]; VO = ["v18", "v19"]
for a in range(NK0): kv_dma(K, KO, LK, a)
if STAMP: A("v_mov_b32 v127, 0\nv_writelane_b32 v127, s96, 63\ns_getreg_b32 s98, hwreg(HW_REG_XCC_ID)\nv_writelane_b32 v127, s98, 62")
stamp("issued0")
A(f"""
s_mov_b64 s[16:17], s[40:41]
s_mov_b32 s18, 0x4000000
s_mov_b32 s19, 0x20000
s_mov_b64 s[20:21], s[44:45]
s_mov_b32 s22, 0x400000
s_mov_b32 s23, 0x20000
s_mov_b32 s30, {0x400000 if STAMP else WSZ}
s_mov_b32 s31, 0x20000
s_mov_b32 s34, 4096
s_mov_b32 s35, 0x20000
s_mov_b32 s66, 0x11111111
s_mov_b32 s67, 0x11111111
s_lshl_b64 {sM1}, {sM0}, 1
s_lshl_b64 {sM2}, {sM0}, 2
s_lshl_b64 {sM3}, {sM0}, 3
s_or_b64 {sM01}, {sM0}, {sM1}
s_mov_b32 {sSPIN}, 0
v_and_b32 {vU}, 3, {vL}
v_bfe_u32 {vHB}, {vL}, 2, 2
v_mov_b32 {vFF}, 0xff
v_lshlrev_b32 v7, 1, {vG}
v_xor_b32 v18, {vN}, v7
v_lshlrev_b32 v18, 4, v18
v_lshl_add_u32 v18, {vG}, 8, v18        ; V voffset 0
v_xor_b32 v19, 0x80, v18
s_mul_i32 s80, {sW}, 1088
s_add_u32 s80, s80, {LXN}
v_lshl_add_u32 v24, {vL}, 4, s80
s_lshl_b32 s80, {sLO}, 8
s_add_u32 s80, s80, {LXN}
v_mul_u32_u24 v25, 1088, {vHB}
v_lshl_add_u32 v25, {vG}, 3, v25
v_add_u32 v25, s80, v25
v_lshl_add_u32 v7, {vG}, 2, {vHB}
v_bfe_u32 v9, v7, 1, 2
v_xor_b32 v9, {sW}, v9
v_lshlrev_b32 v9, 5, v9
v_lshl_add_u32 v9, v7, 7, v9
v_lshl_add_u32 v26, {vU}, 3, v9
v_and_b32 v9, 7, v7
s_lshl_b32 s80, {sW}, 1
v_xor_b32 v9, s80, v9
v_lshlrev_b32 v9, 5, v9
v_lshl_add_u32 v9, v7, 8, v9
v_lshl_add_u32 v27, {vU}, 3, v9
v_xor_b32 v28, 32, v27
v_lshlrev_b32 v29, 4, {vG}
v_lshl_add_u32 v29, {vHB}, 13, v29
v_lshlrev_b32 v30, 5, {vG}
v_lshl_add_u32 v30, {vHB}, 10, v30
s_lshl_b32 s84, {sHKV}, 4
s_add_u32 s84, s84, {sLO}
s_lshl_b32 s84, s84, 3
s_add_u32 s84, s84, {sHI}
s_lshl_b32 s84, s84, 2
s_add_u32 s84, s84, {sW}
s_lshl_b32 s84, s84, 6
s_add_u32 s84, s84, {QP}
s_lshl_b32 s85, {sF0}, 1
s_lshr_b32 s80, {sW}, 1
s_add_u32 s85, s85, s80
s_lshl_b32 s85, s85, 5
s_add_u32 s85, s85, {sLO}
s_lshl_b32 s85, s85, 3
s_and_b32 s80, {sW}, 1
s_add_u32 s85, s85, s80
s_lshl_b32 s85, s85, 4
s_add_u32 s85, s85, {HP}
v_lshlrev_b32 v31, 4, {vN}
v_lshl_add_u32 v31, {vG}, 11, v31
s_lshl_b32 s86, {sHKV}, 2
s_add_u32 s86, s86, {sLO}               ; 4*hkv+lo
s_lshl_b32 s87, s86, 4
s_add_u32 s87, s87, {sW}
s_lshl_b32 s87, s87, 9
s_add_u32 s87, s87, {QP}
s_lshl_b32 s88, s86, 2
s_add_u32 s88, s88, {sW}                ; (4*hkv+h)*4+w
s_lshl_b32 s89, s88, 8
s_add_u32 s89, s89, {sHI}
s_lshl_b32 s89, s89, 7
s_lshl_b32 s90, {sF1}, 2
s_add_u32 s90, s90, {sW}                ; 4*rb+w
s_lshl_b32 s91, s90, 8
s_add_u32 s91, s91, {sHKV}
s_lshl_b32 s91, s91, 7
s_waitcnt lgkmcnt(0)
s_add_u32 {sE}, {sE}, 0x9d5b3701
s_and_b32 {sT[0]}, {sE}, 0xff
s_bfe_u32 {sT[1]}, {sE}, 0x80008
s_bfe_u32 {sT[2]}, {sE}, 0x80010
s_lshr_b32 {sT[3]}, {sE}, 24
""")
A("s_waitcnt vmcnt(%d)" % (4 + 4 * NK0))
stamp("x")
for i in range(4): A("v_lshlrev_b32 v%d, 16, v%d\nv_and_b32 v%d, 0xffff0000, v%d" % (32 + 2 * i, 20 + i, 33 + 2 * i, 20 + i))
A("v_add_f32 v40, v32, v33\nv_add_f32 v41, v34, v35\nv_add_f32 v42, v36, v37\nv_add_f32 v43, v38, v39\nv_add_f32 v40, v40, v41\nv_add_f32 v42, v42, v43\nv_add_f32 v40, v40, v42")
allred64(40, 41)
A("v_mul_f32 v40, 0x3b000000, v40")
for i in range(8): A("v_sub_f32 v%d, v%d, v40" % (44 + i, 32 + i))
A("v_mul_f32 v42, v44, v44\nv_mul_f32 v43, v45, v45")
for i in range(2, 8): A("v_fmac_f32 v%d, v%d, v%d" % (42 + i % 2, 44 + i, 44 + i))
A("v_add_f32 v42, v42, v43")
rbf(40)
for i in range(8): A("v_sub_f32 v%d, v%d, v40" % (32 + i, 32 + i))
allred64(42, 41)
for i in range(4): rbf2(32 + 2 * i, 33 + 2 * i, 32 + 2 * i, 33 + 2 * i, 44 + i)
A("v_mul_f32 v42, 0x3b000000, v42"); rbf(42)
A("v_add_f32 v42, 0x3727c5ac, v42"); rbf(42)
A("v_sqrt_f32 v42, v42"); rbf(42)
A("v_rcp_f32 v42, v42")
for i in range(8): A("v_mul_f32 v%d, v%d, v42" % (32 + i, 32 + i))
for i in range(4): A("v_cvt_pk_bf16_f32 v%d, v%d, v%d" % (20 + i, 32 + 2 * i, 33 + 2 * i))
A("ds_write_b128 v24, v[20:23]")
A("s_waitcnt vmcnt(%d) lgkmcnt(0)\ns_barrier" % (4 * NK0))
stamp("wq")
for t in range(4): A("ds_read2_b64 %s, v25 offset0:%d offset1:%d" % (vr(32 + 4 * t, 4), 8 * t, 8 * t + 4))
def proj(lds, voff, soff):
    for t in range(4):
        for h in range(2): A("ds_read_b64_tr_b16 %s, v26 offset:%d" % (vr(48 + 4 * t + 2 * h, 2), lds + t * 4096 + h * 2048))
    for t in range(4):
        A("s_waitcnt lgkmcnt(%d)" % (6 - 2 * t)); mfma(64, 48 + 4 * t, 32 + 4 * t, "0" if t == 0 else None)
    tag(64)
    A(f"s_mov_b64 exec, {sM0}\nbuffer_store_dwordx4 v[64:67], {voff}, {WS}, {soff} offen sc1\ns_mov_b64 exec, -1")
proj(LWQ, "v29", "s84")
A(f"s_cmp_eq_u32 {sROLE}, 1\ns_cbranch_scc0 L_noh")
proj(LW1, "v30", "s85")
A("L_noh:\ns_barrier")
stamp("qpub")
def qgather():
    for i in range(2): A(f"buffer_load_dwordx4 {vr(32 + 4 * i, 4)}, v31, {WS}, s87 offen offset:{256 * i} sc1")
for a in range(NK0, 4): kv_dma(K, KO, LK, a)
for a in range(NV0): kv_dma(V, VO, LV, a)
qgather()
stamp("qg_issued")
for a in range(NV0, 4): kv_dma(V, VO, LV, a)
tile_dma(WO, "v13", "s89", 1024, LWO)
A(f"""
v_xor_b32 v7, {vG}, {vN}
v_lshlrev_b32 v7, 4, v7
v_lshl_add_u32 v7, {vN}, 8, v7
s_add_u32 s80, {sW4K}, {LK}
v_add_u32 v14, s80, v7
v_xor_b32 v15, 64, v14
v_xor_b32 v16, 0x80, v14
v_xor_b32 v17, 0xc0, v14
v_lshrrev_b32 v7, 1, {vG}
v_and_b32 v9, 1, {vG}
v_lshlrev_b32 v10, 7, v7
v_lshl_add_u32 v10, {vN}, 3, v10
v_lshl_add_u32 v10, v9, 2, v10
s_mul_i32 s80, {sW}, 320
s_add_u32 s80, s80, {LQ}
v_add_u32 v24, s80, v10
v_mul_u32_u24 v25, 320, {vHB}
v_lshl_add_u32 v25, {vG}, 4, v25
v_add_u32 v25, {LQ}, v25
v_and_b32 v10, 2, {vHB}
v_add_u32 v10, v10, v9
v_lshl_add_u32 v7, v7, 2, v10
v_and_b32 v9, 1, {vHB}
v_lshl_add_u32 v7, v7, 1, v9            ; row
v_lshlrev_b32 v10, 5, v10
v_lshl_add_u32 v10, v7, 7, v10
v_lshl_add_u32 v10, {vU}, 3, v10
s_add_u32 s80, {sW4K}, {LW2}
v_add_u32 v20, s80, v10
v_xor_b32 v21, 32, v20
v_xor_b32 v22, 64, v20
v_xor_b32 v23, 0x60, v20
v_lshlrev_b32 v8, 4, {vHB}
v_add_u32 v8, {LMX}, v8
s_lshl_b32 s80, {sW}, 2
v_add_u32 v9, s80, v8
v_mul_u32_u24 v11, 576, {vHB}
v_lshl_add_u32 v11, {vG}, 4, v11
v_add_u32 v11, {LP}, v11                ; P read
s_lshr_b32 s80, {sW}, 1
s_lshl_b32 s80, s80, 3
s_and_b32 s81, {sW}, 1
s_add_u32 s80, s80, s81
s_lshl_b32 s80, s80, 3
v_lshl_add_u32 v10, {vU}, 7, v11
v_add_u32 v10, s80, v10                 ; P write
v_lshlrev_b32 v12, 4, {vU}
v_lshl_add_u32 v29, {vG}, 5, v12
v_lshl_add_u32 v29, {vHB}, 14, v29      ; O publish
v_lshl_add_u32 v12, {vG}, 7, v12
v_lshl_add_u32 v12, {vHB}, 10, v12      ; O / h gather
v_and_b32 v7, 1, {vU}
v_lshl_add_u32 v7, v7, 2, {vG}
v_lshl_add_u32 v7, {vHB}, 3, v7
v_lshlrev_b32 v30, 4, v7
v_mov_b32 v26, 0
s_lshl_b32 s80, {sLO}, 3
s_add_u32 s80, s80, {sHI}               ; 8*b+s
s_lshl_b32 s81, {sHKV}, 2
s_add_u32 s81, s81, {sW}
s_lshl_b32 s81, s81, 5
s_add_u32 s81, s81, s80
s_lshl_b32 s81, s81, 4
s_add_u32 s84, s81, {ST}
s_lshl_b32 s85, {sHKV}, 16
s_add_u32 s85, s85, {sW4K}
s_lshl_b32 s80, s80, 7
s_add_u32 s85, s85, s80
s_add_u32 s85, s85, {OP}                ; O publish
s_lshl_b32 s92, s86, 9
s_add_u32 s92, s92, {ST}
s_lshl_b32 s88, s88, 12
s_add_u32 s88, s88, {OP}                ; O gather
s_lshl_b32 s90, s90, 12
s_add_u32 s90, s90, {HP}                ; h gather
""")
stamp("allissued")
A("s_waitcnt vmcnt(%d)\ns_branch L_qchk\nL_qagain:" % (4 * (4 - NV0) + 4))
qgather()
A("s_waitcnt vmcnt(0)\nL_qchk:")
untag(32, 8, 40)
retry("L_qagain", "L_qok")
stamp("q_ok")
rscatter8(32)
A("v_cvt_pk_bf16_f32 v32, v32, v33\nds_write_b32 v24, v32")
for a in range(4):
    for j in range(4): A("ds_read_b128 %s, v%d offset:%d" % (vr(64 + 16 * a + 4 * j, 4), 14 + j, 16384 * a)) if a < 3 else None
A("s_waitcnt lgkmcnt(12)\ns_barrier")
for j in range(3): A("ds_read_b128 %s, v25 offset:%d" % (vr(32 + 4 * j, 4), 64 * j))
A("s_waitcnt lgkmcnt(8)\nds_read_b128 v[44:47], v25 offset:192")
for j in range(4): A("ds_read_b128 %s, v%d offset:%d" % (vr(112 + 4 * j, 4) if j < 3 else "v[128:131]", 14 + j, 16384 * 3))
A("s_waitcnt lgkmcnt(4)")
for a in range(4):
    if a == 3: A("s_waitcnt lgkmcnt(0)")
    for j in range(4): mfma(48 + 4 * a, (64 + 16 * a + 4 * j) if (a, j) != (3, 3) else 128, 32 + 4 * j, "0" if j == 0 else None)
def hgather():
    for i in range(2): A(f"buffer_load_dwordx4 {vr(132 + 4 * i, 4)}, v12, {WS}, s90 offen offset:{64 * i} sc1")
A(f"s_cmp_eq_u32 {sROLE}, 2\ns_cbranch_scc0 L_now2")
tile_dma(WF, "v13", "s91", 1024, LW2)
hgather()
A("L_now2:\ns_nop 4")
for a, m in ((1, sM1), (2, sM2), (3, sM3)):
    for e in range(4): A("v_cndmask_b32 v%d, v%d, v%d, %s" % (48 + e, 48 + e, 48 + 4 * a + e, m))
rbf2(48, 49, 48, 49, 52); rbf2(50, 51, 50, 51, 53)
for e in range(4): A("v_mul_f32 v%d, 0x3db504f3, v%d" % (48 + e, 48 + e))
rbf2(48, 49, 48, 49, 52); rbf2(50, 51, 50, 51, 53)
A("v_max_f32 v52, v48, v49\nv_max3_f32 v52, v52, v50, v51")
for c in ("quad_perm:[1,0,3,2]", "quad_perm:[2,3,0,1]"): A("v_max_f32_dpp v52, v52, v52 %s %s" % (c, DPP))
allred_g("v_max_f32", 52, 53)
A("s_mov_b64 exec, 0x1111\nds_write_b32 v9, v52\ns_mov_b64 exec, -1\ns_waitcnt lgkmcnt(0)\ns_barrier")
A("ds_read_b128 v[52:55], v8\nv_mov_b32 v60, 0x3f803f80\nv_mov_b32 v61, v60\nv_mov_b32 v62, v60\nv_mov_b32 v63, v60\ns_waitcnt lgkmcnt(0)")
A("v_max_f32 v52, v52, v53\nv_max3_f32 v56, v52, v54, v55")
for e in range(4): A("v_sub_f32 v%d, v%d, v56" % (48 + e, 48 + e))
for e in range(4): A("v_mul_f32 v%d, 0x3fb8aa3b, v%d" % (48 + e, 48 + e))
for e in range(4): A("v_exp_f32 v%d, v%d" % (48 + e, 48 + e))
A("v_cvt_pk_bf16_f32 v48, v48, v49\nv_cvt_pk_bf16_f32 v49, v50, v51\nds_write_b64 v10, v[48:49]")
def vwait(n, lbl):
    A(f"s_cmp_eq_u32 {sROLE}, 2\ns_cbranch_scc1 {lbl}\ns_waitcnt vmcnt({n})\n{lbl}:\ns_waitcnt vmcnt({n + 6}) lgkmcnt(0)\ns_barrier")
stamp("p_done")
vwait(8, "L_vw1")
stamp("v012")
for t in range(8): A("ds_read_b128 %s, v11 offset:%d" % (vr(64 + 4 * t, 4), 64 * t))
def vreads(t, r):
    for mt in range(2):
        for h in range(2): A("ds_read_b64_tr_b16 %s, v%d offset:%d" % (vr(r + 4 * mt + 2 * h, 2), 27 + mt, t * 8192 + h * 4096))
vreads(0, 96)
A("s_waitcnt lgkmcnt(4)")
vreads(1, 104)
vreads(2, 112)
for t in range(8): mfma(52, 60, 64 + 4 * t, "0" if t == 0 else None)
R3 = (96, 104, 112)
for t in range(6):
    A("s_waitcnt lgkmcnt(%d)" % (8 if t < 4 else 4 * (5 - t)))
    for mt in range(2): mfma(40 + 4 * mt, R3[t % 3] + 4 * mt, 64 + 4 * t, "0" if t == 0 else None)
    if t + 3 < 6: vreads(t + 3, R3[t % 3])
    if t == 1:
        A(f"v_mov_b32 v57, v52\nv_mov_b32 v58, {sE}\nv_mov_b32 v59, {sE}\ns_lshl_b32 s80, {sW}, 2\ns_lshl_b64 exec, 1, s80")
        A(f"buffer_store_dwordx4 v[56:59], v26, {WS}, s84 offen sc1\ns_mov_b64 exec, -1")
vwait(5, "L_vw2")
stamp("v3")
vreads(6, 96); vreads(7, 104)
for t in (6, 7):
    A("s_waitcnt lgkmcnt(%d)" % (4 * (7 - t)))
    for mt in range(2): mfma(40 + 4 * mt, R3[t - 6] + 4 * mt, 64 + 4 * t)
for e in range(4): A("v_cndmask_b32 v%d, v%d, v%d, %s" % (40 + e, 40 + e, 44 + e, sM1))
tag(40)
A(f"s_mov_b64 exec, {sM01}\nbuffer_store_dwordx4 v[40:43], v29, {WS}, s85 offen sc1\ns_mov_b64 exec, -1")
stamp("o_pub")
def ogather():
    A(f"buffer_load_dwordx4 v[56:59], v30, {WS}, s92 offen sc1")
    for sh in range(2):
        for i in range(2): A(f"buffer_load_dwordx4 {vr(64 + 8 * sh + 4 * i, 4)}, v12, {WS}, s88 offen offset:{512 * sh + 64 * i} sc1")
ogather()
A(f"""
v_lshl_add_u32 v7, {vHB}, 2, {vU}
v_lshl_add_u32 v7, v7, 2, {vG}
v_lshlrev_b32 v7, 4, v7
s_lshl_b32 s80, {sW}, 10
s_add_u32 s80, s80, {LRS}
v_add_u32 v24, s80, v7
v_lshlrev_b32 v31, 4, {vL}
s_add_u32 s80, {sW4K}, {LRS}
v_add_u32 v25, s80, v31
v_and_b32 v7, 7, {vN}
v_lshlrev_b32 v9, 4, v7
v_lshrrev_b32 v10, 3, {vL}
v_and_b32 v10, 1, v10
v_lshl_add_u32 v10, {vG}, 4, v10
v_mul_u32_u24 v10, 6144, v10
v_add_u32 v29, v10, v9
v_lshl_add_u32 v7, v7, 2, {vG}
v_lshlrev_b32 v8, 1, v7
s_mul_i32 s84, {sHI}, 12288
s_lshl_b32 s80, s86, 7
s_add_u32 s84, s84, s80
s_mul_i32 s85, {sHKV}, 12288
s_lshl_b32 s80, {sF1}, 7
s_add_u32 s85, s85, s80
s_add_u32 s85, s85, 4096
s_cmp_eq_u32 {sW}, 0
s_cselect_b32 s84, s84, s85
s_add_u32 s84, s84, {SP}
s_waitcnt vmcnt(7)
""")
def wreads(r, off):
    for mt in range(4):
        for h in range(2): A("ds_read_b64_tr_b16 %s, v%d offset:%d" % (vr(r + 4 * mt + 2 * h, 2), 20 + mt, off + h * 2048))
def wstage(a, b, off):
    for mt in range(4): mfma(32 + 4 * mt, a + 4 * mt, b, "0")
    for mt, m in enumerate((sM0, sM1, sM2, sM3)):
        A("s_mov_b64 exec, %s\nds_write_b128 v24, %s offset:%d" % (m, vr(32 + 4 * mt, 4), off))
    A("s_mov_b64 exec, -1")
wreads(96, LWO - LW2)
A(f"s_cmp_eq_u32 {sROLE}, 2\ns_cbranch_scc0 L_noffn")
wreads(80, 0)
A("s_branch L_hchk\nL_hagain:")
hgather()
A("s_waitcnt vmcnt(0)\nL_hchk:")
untag(132, 8, 140)
retry("L_hagain", "L_hok")
rscatter8(132)
A("v_max_f32 v132, 0, v132\nv_max_f32 v133, 0, v133\nv_cvt_pk_bf16_f32 v132, v132, v133")
quad_b(136, 132)
A("s_waitcnt lgkmcnt(0)")
wstage(80, 136, 4096)
A("L_noffn:\ns_branch L_ow\nL_oagain:")
ogather()
A("L_ow:\ns_waitcnt vmcnt(4)")
A(f"v_max_f32_dpp v60, v56, v56 quad_perm:[1,0,3,2] {DPP}")
A(f"v_xor_b32 v58, {sE}, v58\nv_xor_b32 v59, {sE}, v59")
allred_g("v_max_f32", 60, 61)
A("v_sub_f32 v60, v56, v60\nv_mul_f32 v60, 0x3fb8aa3b, v60\nv_exp_f32 v60, v60\nv_or_b32 v58, v58, v59\nv_mul_f32 v61, v60, v57")
A("v_cmp_ne_u32 s[80:81], 0, v58")
A(f"v_add_f32_dpp v61, v61, v61 quad_perm:[1,0,3,2] {DPP}")
allred_g("v_add_f32", 61, 62)
A("v_rcp_f32 v61, v61\nv_mul_f32 v60, v60, v61")
A(f"v_mov_b32_dpp v62, v60 quad_perm:[0,0,0,0] {DPP}\nv_mov_b32_dpp v63, v60 quad_perm:[1,1,1,1] {DPP}")
A("s_waitcnt vmcnt(0)")
untag(64, 16, 61)
A("s_or_b64 vcc, vcc, s[80:81]")
retry("L_oagain", "L_ook")
stamp("o_ok")
for e in range(8): A("v_mul_f32 v%d, v%d, v62" % (64 + e, 64 + e))
for e in range(8): A("v_fmac_f32 v%d, v%d, v63" % (64 + e, 72 + e))
rscatter8(64)
A("v_cvt_pk_bf16_f32 v64, v64, v65")
quad_b(68, 64)
A("s_waitcnt lgkmcnt(0)")
wstage(96, 68, 0)
A("s_waitcnt lgkmcnt(0)\ns_barrier")
A(f"s_cmp_ge_u32 {sW}, 2\ns_cbranch_scc1 L_final\ns_lshl_b32 s80, {sW}, 1\ns_andn2_b32 s80, s80, {sROLE}\ns_cbranch_scc1 L_done")
for i in range(4): A("ds_read_b128 %s, v25 offset:%d" % (vr(32 + 4 * i, 4), 1024 * i))
A("s_waitcnt lgkmcnt(2)")
for e in range(4): A("v_add_f32 v%d, v%d, v%d" % (32 + e, 32 + e, 36 + e))
A("s_waitcnt lgkmcnt(0)")
for e in range(4): A("v_add_f32 v%d, v%d, v%d" % (40 + e, 40 + e, 44 + e))
for e in range(4): A("v_add_f32 v%d, v%d, v%d" % (32 + e, 32 + e, 40 + e))
tag(32)
A(f"buffer_store_dwordx4 v[32:35], v29, {WS}, s84 offen sc1")
stamp("s_pub")
A("s_branch L_done")
A(f"L_final:\ns_cmp_eq_u32 {sW}, 2\ns_cbranch_scc0 L_done\ns_sub_u32 s82, s2, 192\ns_cbranch_scc1 L_done")
A(f"s_mul_i32 s84, s82, 6144\ns_add_u32 s84, s84, {SP}\ns_add_u32 s85, s84, 4096\ns_lshl_b32 s83, s82, 6")
A(f"buffer_load_ushort v60, v8, {X}, s83 offen")
A("L_fagain:")
for i in range(4): A(f"buffer_load_dwordx4 {vr(32 + 4 * i, 4)}, v31, {WS}, s84 offen offset:{1024 * i} sc1")
A(f"buffer_load_dwordx4 v[48:51], v31, {WS}, s85 offen sc1")
for e in range(4): A("v_mov_b32 v%d, %s" % (52 + e, sT[e]))
A(f"s_mov_b32 exec_hi, 0xffff\nbuffer_load_dwordx4 v[52:55], v31, {WS}, s85 offen offset:1024 sc1\ns_mov_b32 exec_hi, -1")
A("s_waitcnt vmcnt(0)")
untag(32, 24, 61)
retry("L_fagain", "L_fok")
stamp("f_ok")
for e in range(4): A("v_add_f32 v%d, v%d, v%d" % (48 + e, 48 + e, 52 + e))
for e in range(8): A("v_add_f32 v%d, v%d, v%d" % (32 + e, 32 + e, 40 + e))
for e in range(4): A("v_add_f32 v%d, v%d, v%d" % (32 + e, 32 + e, 36 + e))
for r in (48, 32):
    for e in range(2): A("v_permlane32_swap_b32 v%d, v%d" % (r + e, r + 2 + e))
for r in (48, 32):
    for e in range(2): A("v_add_f32 v%d, v%d, v%d" % (r + e, r + e, r + 2 + e))
for r in (48, 32): A("v_permlane16_swap_b32 v%d, v%d" % (r, r + 1))
for r in (48, 32): A("v_add_f32 v%d, v%d, v%d" % (r, r, r + 1))
A("v_lshlrev_b32 v60, 16, v60")
for r in (48, 32): A("v_add_f32_dpp v%d, v%d, v%d row_ror:8 %s" % (r, r, r, DPP))
rbf2(48, 32, 48, 32, 33)
A("v_mul_f32 v49, 0xbfb8aa3b, v48\nv_exp_f32 v49, v49\nv_add_f32 v49, 1.0, v49\nv_rcp_f32 v49, v49\nv_mul_f32 v48, v48, v49")
rbf(48)
A("v_mul_f32 v32, v32, v48"); rbf(32)
A("v_add_f32 v32, v60, v32\nv_cvt_pk_bf16_f32 v32, v32, v32")
A(f"s_mov_b32 exec_lo, 0x00ff00ff\ns_mov_b32 exec_hi, 0x00ff00ff\nbuffer_store_short v32, v8, {OUT}, s83 offen")
A(f"s_cmp_eq_u32 s82, 0\ns_cbranch_scc0 L_done\nv_mov_b32 v33, {sE}\ns_mov_b64 exec, 1\nbuffer_store_dword v33, v26, {WS}, 0 offen")
A("L_done:")
if P["DIAG"]:
    stamp("end")
    A("s_sub_u32 s94, s94, s96\ns_lshl_b32 s94, s94, 2\ns_add_u32 s94, s94, 4000\nL_diag:\ns_memrealtime s[98:99]\ns_waitcnt lgkmcnt(0)\ns_sub_u32 s98, s98, s96\ns_cmp_lt_u32 s98, s94\ns_cbranch_scc1 L_diag")
if STAMP:
    A("s_mov_b64 exec, -1")
    stamp("end")
    A(f"v_writelane_b32 v127, {sSPIN}, 61")
    A(f"s_lshl_b32 s80, s2, 10\ns_add_u32 s80, s80, {STP}\nv_lshlrev_b32 v7, 2, v0\nbuffer_store_dword v127, v7, {WS}, s80 offen")
A("L_end:\ns_endpgm")
hdr = open("recurrent_scan__sliding_block_cached__dense_activation_relu__decode.s.ref").read().split("; Override launch")[0]
print(hdr + "; @launch grid=(256,1,1) block=(256,1,1) lds=%d" % LDS_BYTES)
print('.amdgcn_target "amdgcn-amd-amdhsa--gfx950"\n.text\n.globl %s\n.p2align 8\n.type %s,@function\n%s:' % (KN, KN, KN))
print(A.text())
print('.section .rodata,"a"\n.p2align 6\n.amdhsa_kernel %s\n  .amdhsa_next_free_vgpr 144\n  .amdhsa_next_free_sgpr 102\n  .amdhsa_accum_offset 144\n  .amdhsa_group_segment_fixed_size 0\n  .amdhsa_kernarg_size 88\n  .amdhsa_user_sgpr_count 2\n  .amdhsa_user_sgpr_kernarg_segment_ptr 1\n  .amdhsa_system_sgpr_workgroup_id_x 1\n.end_amdhsa_kernel' % KN)
```

```python
import sys
from asmlib import Asm
KN = "recurrent_scan__sliding_block_cached__dense_activation_relu__decode_kernel"
P = dict(FAST=1, PRE=1, QG2=1, HEAD=2, NK0=2, NV0=1, PKV="nt", PW="nt", STAMP=0, SPIN=200000, WARM=0, QX=0, PSTG="sc1", FINE=0, SLEEP=0, PST="sc1", PLD="sc1", K2E=1, DIAG="")
for a in sys.argv[1:]:
    k, v = a.split("=")
    P[k] = type(P[k])(v) if v != "def" else ""
PSTG = P["PSTG"]
PST, PLD = P["PST"].replace("_", " "), P["PLD"].replace("_", " ")
NK0, NV0, PKV, PW, STAMP = P["NK0"], P["NV0"], P["PKV"], P["PW"], P["STAMP"]
LV, LK, LF, LS = 0, 65536, 131072, 147456
LWQ, LWO = LV + 49152, LK + 49152
LXN = LS; LQ = LXN + 4352; LMX = LQ + 1280; LL = LMX + 64; LP = LL + 64; LRS = LP + 2304 + 128; LRG = LRS + 4096
LDS_BYTES = LRG + 4096
assert LRS % 256 == 0 and LDS_BYTES <= 163840
QP, HP, ST, OP, SP, WSZ = 0x1000, 0x41000, 0x79000, 0x80000, 0x100000, 0x160000
STP = 0x200000
DPP = "row_mask:0xf bank_mask:0xf"
A = Asm()
nst = [0]
def stamp(name):
    if P["DIAG"] == name: A("s_memrealtime s[94:95]\ns_waitcnt lgkmcnt(0)")
    if not STAMP: return
    i = nst[0]; nst[0] += 1
    A("s_memrealtime s[98:99]\ns_waitcnt lgkmcnt(0)\nv_writelane_b32 v127, s98, %d ; stamp %s" % (i, name))
    print("stamp", i, name, file=sys.stderr)
X, WQ, K, V, WO, WF, WS, OUT = ("s[%d:%d]" % (i, i + 3) for i in range(4, 36, 4))
sW, sHKV, sLO, sHI, sROLE, sE = "s52", "s53", "s55", "s56", "s57", "s60"
sT = ["s61", "s62", "s63", "s64"]
sKV, sW4K = "s58", "s59"
sM0, sM1, sM2, sM3, sM01 = "s[66:67]", "s[68:69]", "s[70:71]", "s[72:73]", "s[74:75]"
sF0, sF1 = "s76", "s77"
sSPIN = "s78"
sKS, sHQ, sC2 = "s66", "s67", "s68"
vL, vN, vG, vU, vHB, vFF = "v1", "v2", "v3", "v4", "v5", "v6"
def vr(a, n): return "v[%d:%d]" % (a, a + n - 1)

def tile_dma(srd, voff, sbase, pitch, lds, rows=(0, 8, 16, 24)):
    A("s_add_u32 m0, %s, %d" % (sW4K, lds))
    for i in range(4):
        if i: A("s_add_i32 %s, %s, %d" % (sbase, sbase, (rows[i] - rows[i - 1]) * pitch - 1024))
        A("buffer_load_dwordx4 %s, %s, %s offen offset:%d %s lds" % (voff, srd, sbase, 1024 * i, PW))
def kv_dma(srd, voffs, lds, a, i0=0, i1=4):
    if i0 == i1: return
    A("s_add_u32 m0, %s, %d\ns_add_u32 s79, %s, %d" % (sW4K, lds + a * 16384, sKV, a * 16384))
    for i in range(i0, i1):
        A("buffer_load_dwordx4 %s, %s, s79 offen offset:%d %s lds" % (voffs[i % len(voffs)], srd, 1024 * i, PKV))
    if srd == K and a < 3 and i1 == 4:
        for v in voffs: A("v_xor_b32 %s, %d, %s" % (v, (a ^ (a + 1)) << 6, v))
def tag(r):
    for e in range(4): A("v_bfi_b32 v%d, %s, %s, v%d" % (r + e, vFF, sT[e], r + e))
def untag(r, n, t):
    for e in range(n): A("v_xor_b32 v%d, %s, v%d" % (r + e, sT[e % 4], r + e))
    A("v_or3_b32 v%d, v%d, v%d, v%d" % (t, r, r + 1, r + 2))
    i = 3
    while i + 1 < n:
        A("v_or3_b32 v%d, v%d, v%d, v%d" % (t, t, r + i, r + i + 1)); i += 2
    A("v_bitop3_b32 v%d, v%d, v%d, %s bitop3:0xa8" % (t, t, r + i, vFF))
    A("v_cmp_ne_u32 vcc, 0, v%d" % t)
def retry(lbl_again, lbl_ok):
    A("s_cbranch_vccz %s\ns_mov_b64 exec, vcc\n" % lbl_ok + ("s_sleep %d\n" % P["SLEEP"] if P["SLEEP"] else "") + "s_add_u32 %s, %s, 1\ns_cmp_lt_u32 %s, %d\ns_cbranch_scc1 %s\n%s:" % (sSPIN, sSPIN, sSPIN, P["SPIN"], lbl_again, lbl_ok))
    A("s_mov_b64 exec, -1")
def rscatter8(r, alt=False):
    for e in range(4): A("v_permlane32_swap_b32 v%d, v%d" % (r + e, r + 4 + e))
    for e in range(4): A("v_add_f32 v%d, v%d, v%d" % (r + e, r + e, r + 4 + e))
    pr = ((0, 1), (2, 3)) if alt else ((0, 2), (1, 3))
    for a, b in pr: A("v_permlane16_swap_b32 v%d, v%d" % (r + a, r + b))
    for e, (a, b) in enumerate(pr): A("v_add_f32 v%d, v%d, v%d" % (r + e, r + a, r + b))
def allred_g(op, r, t):
    A("v_mov_b32 v%d, v%d\nv_permlane16_swap_b32 v%d, v%d\n%s v%d, v%d, v%d" % (t, r, r, t, op, r, r, t))
    A("v_mov_b32 v%d, v%d\nv_permlane32_swap_b32 v%d, v%d\n%s v%d, v%d, v%d" % (t, r, r, t, op, r, r, t))
def allred64(r, t):
    for c in ("quad_perm:[1,0,3,2]", "quad_perm:[2,3,0,1]", "row_half_mirror", "row_mirror"):
        A("v_add_f32_dpp v%d, v%d, v%d %s %s" % (r, r, r, c, DPP))
    allred_g("v_add_f32", r, t)
def rbf(r):
    A("v_cvt_pk_bf16_f32 v%d, v%d, v%d\nv_and_b32 v%d, 0xffff0000, v%d" % (r, r, r, r, r))
def rbf2(d0, d1, a, b, t):
    A("v_cvt_pk_bf16_f32 v%d, v%d, v%d\nv_lshlrev_b32 v%d, 16, v%d\nv_and_b32 v%d, 0xffff0000, v%d" % (t, a, b, d0, t, d1, t))
def quad_b(dst, src):
    for i, r in enumerate((0, 1, 2, 3)):
        A("v_mov_b32_dpp v%d, v%d quad_perm:[%d,%d,%d,%d] %s" % (dst + i, src, r, r, r, r, DPP))
def mfma(d, a, b, c=None):
    A("v_mfma_f32_16x16x32_bf16 %s, %s, %s, %s" % (vr(d, 4), vr(b, 4), vr(a, 4), vr(d, 4) if c is None else c))

sFAST = "s69"
def gstore(ins, lbl):
    if P["FAST"] == 0: A(ins + " sc1"); return
    if P["FAST"] == 2: A(ins); return
    A(f"s_cmp_eq_u32 {sFAST}, 0\ns_cbranch_scc1 {lbl}_f\n{ins} sc1\ns_branch {lbl}_e\n{lbl}_f:\n{ins}\n{lbl}_e:")
def role_wait(n, extra, lbl, role, tail=""):
    A(f"s_cmp_{role}\ns_cbranch_scc1 {lbl}\ns_waitcnt vmcnt({n})\n{lbl}:\ns_waitcnt vmcnt({n + extra}) {tail}")
if STAMP or P["DIAG"]: A("s_memrealtime s[96:97]\ns_memrealtime s[94:95]")
A("s_load_dwordx16 s[36:51], s[0:1], 0\ns_load_dwordx4 s[72:75], s[0:1], 72\ns_load_dwordx2 s[32:33], s[0:1], 64")
A("s_cmp_ge_u32 s2, 256\ns_cbranch_scc1 L_end")
A(f"""
v_lshrrev_b32 v7, 6, v0
v_and_b32 {vL}, 63, v0
v_readfirstlane_b32 {sW}, v7
v_lshlrev_b32 v8, 4, v0                 ; x offset
v_lshrrev_b32 {vG}, 4, {vL}
s_and_b32 {sHKV}, s2, 7
s_bfe_u32 {sLO}, s2, 0x20003
s_lshr_b32 {sHI}, s2, 5
s_mov_b32 s6, 4096
s_mov_b32 s7, 0x20000
s_mov_b32 s10, 0x400000
s_mov_b32 s11, 0x20000
s_mov_b32 s14, 0x4000000
s_mov_b32 s15, 0x20000
s_mov_b32 s26, 1835008
s_mov_b32 s27, 0x20000
s_lshl_b32 {sW4K}, {sW}, 12
v_lshrrev_b32 v9, 3, {vL}
v_and_b32 v10, 7, {vL}
v_lshlrev_b32 v7, 1, {vG}
v_xor_b32 v10, v10, v7
v_lshlrev_b32 v10, 4, v10
v_lshl_add_u32 v11, v9, 13, v10
v_mul_u32_u24 v12, 3584, v9
v_add_u32 v12, v12, v10                 ; w1 voffset
v_lshrrev_b32 v7, 2, v9
v_and_b32 v13, 2, v9
v_add_u32 v13, v13, v7
v_and_b32 v18, 1, v9
v_lshl_add_u32 v13, v13, 1, v18
v_lshl_add_u32 v13, v13, 10, v10
v_lshlrev_b32 v14, 4, {vL}
v_xor_b32 v15, 16, v14
v_xor_b32 v16, 32, v14
v_xor_b32 v17, 48, v14
s_lshl_b32 s80, {sLO}, 2
s_add_u32 s80, s80, {sW}
s_lshl_b32 s81, s80, 18
s_lshl_b32 s82, {sHKV}, 3
s_add_u32 s82, s82, {sHI}
s_lshl_b32 s82, s82, 7
s_add_u32 s81, s81, s82
s_lshl_b32 {sF0}, {sHKV}, 2
s_add_u32 {sF0}, {sF0}, {sHI}
s_mul_i32 s83, s80, 114688
s_lshl_b32 s82, {sF0}, 7
s_add_u32 s83, s83, s82                 ; w1 base
s_bfe_u32 {sC2}, s2, 0x30003
s_bfe_u32 {sF1}, s2, 0x10006
s_lshl_b32 s82, {sHKV}, 1
s_add_u32 {sF1}, {sF1}, s82
s_lshl_b32 s90, {sF1}, 2
s_add_u32 s90, s90, {sW}                ; 4*rb+w
s_lshl_b32 s91, s90, 8
s_add_u32 s91, s91, {sC2}
s_lshl_b32 s91, s91, 7                  ; w2 base
s_lshl_b32 {sKV}, {sLO}, 3
s_add_u32 {sKV}, {sKV}, {sHKV}
s_lshl_b32 {sKV}, {sKV}, 5
s_add_u32 {sKV}, {sKV}, {sHI}
s_lshl_b32 {sKV}, {sKV}, 16
s_add_u32 {sKV}, {sKV}, {sW4K}
s_add_u32 {sKV}, {sKV}, 0x180000
s_getreg_b32 s70, hwreg(HW_REG_XCC_ID, 0, 4)
s_or_b32 s70, s70, 0x80
s_lshl_b32 s92, {sHKV}, 5
s_lshr_b32 s93, s2, 3
s_add_u32 s93, s93, s92
v_mov_b32 v19, s70
v_mov_b32 v18, s93
s_cmp_lt_u32 s2, 128
s_cselect_b32 {sROLE}, 1, 2
s_cmp_lt_u32 {sHKV}, 7
s_cselect_b32 {sROLE}, {sROLE}, 0
s_cmp_lt_u32 s2, 128
s_waitcnt lgkmcnt(0)
s_cselect_b64 s[24:25], s[48:49], s[50:51]
s_mov_b64 s[4:5], s[36:37]
s_mov_b64 s[8:9], s[42:43]
buffer_load_dwordx4 v[20:23], v8, {X}, 0 offen
s_load_dword {sE}, s[74:75], 0
s_mov_b64 s[12:13], s[38:39]
""")
NS = 0
if P["FAST"] == 1:
    A(f"s_cmp_eq_u32 {sW}, 0\ns_cbranch_scc0 L_nox\ns_mov_b64 exec, 1\nglobal_store_byte v18, v19, s[72:73]\ns_mov_b64 exec, -1\nL_nox:")
tile_dma(WQ, "v11", "s81", 8192, LWQ)
A(f"s_cmp_eq_u32 {sROLE}, 1\ns_cbranch_scc0 L_now1")
tile_dma(WF, "v12", "s83", 3584, LF)
A(f"L_now1:\ns_cmp_eq_u32 {sROLE}, 2\ns_cbranch_scc0 L_now2")
tile_dma(WF, "v13", "s91", 1024, LF, (0, 16, 8, 24))
A("L_now2:")
KO = ["v14", "v15", "v16", "v17"]; VO = ["v144", "v145"]
HEAD = P["HEAD"]
kv_dma(K, KO, LK, 0, 0, HEAD)
if P["WARM"]:
    A(f"s_cmp_eq_u32 {sW}, 3\ns_cbranch_scc0 L_nowarm\ns_getpc_b64 s[80:81]\nL_pc:\nv_lshlrev_b32 v7, 7, {vL}\nv_mov_b32 v163, s81\nv_add_co_u32 v162, vcc, s80, v7\ns_nop 1\nv_addc_co_u32 v163, vcc, 0, v163, vcc")
    A("v_cmp_gt_u32 vcc, L_end-L_pc, v7\ns_mov_b64 exec, vcc\nglobal_load_dword v162, v[162:163], off\ns_mov_b64 exec, -1\nL_nowarm:")
if STAMP: A("v_mov_b32 v127, 0\nv_writelane_b32 v127, s96, 63\nv_writelane_b32 v127, s70, 62")
stamp("issued0")
A(f"""
s_mov_b64 s[16:17], s[40:41]
s_mov_b32 s18, 0x4000000
s_mov_b32 s19, 0x20000
s_mov_b64 s[20:21], s[44:45]
s_mov_b32 s22, 0x400000
s_mov_b32 s23, 0x20000
s_mov_b64 s[28:29], s[74:75]
s_mov_b32 s30, {0x400000 if STAMP else WSZ}
s_mov_b32 s31, 0x20000
s_mov_b32 s34, 4096
s_mov_b32 s35, 0x20000
s_mov_b32 {sSPIN}, 0
v_and_b32 {vN}, 15, {vL}
v_and_b32 {vU}, 3, {vL}
v_bfe_u32 {vHB}, {vL}, 2, 2
v_mov_b32 {vFF}, 0xff
s_mul_i32 s80, {sW}, 1088
s_add_u32 s80, s80, {LXN}
v_lshl_add_u32 v24, {vL}, 4, s80
s_lshl_b32 s80, {sLO}, 8
s_add_u32 s80, s80, {LXN}
v_mul_u32_u24 v25, 1088, {vHB}
v_lshl_add_u32 v25, {vG}, 3, v25
v_add_u32 v25, s80, v25
v_lshrrev_b32 v7, 2, v9
v_and_b32 v13, 3, v9
v_lshl_add_u32 v13, v7, 4, v13
v_lshl_add_u32 v13, v13, 10, v10
v_lshl_add_u32 v7, {vG}, 2, {vHB}
v_bfe_u32 v9, v7, 1, 2
v_lshlrev_b32 v9, 5, v9
v_lshl_add_u32 v9, v7, 7, v9
v_lshl_add_u32 v9, {vU}, 3, v9
s_lshl_b32 s80, {sW}, 5
v_xor_b32 v26, s80, v9
v_add_u32 v146, {LF}, v26               ; w1
s_add_u32 s80, {sW4K}, {LWO}
v_add_u32 v148, s80, v9
v_xor_b32 v149, 32, v148
v_xor_b32 v150, 64, v148
v_xor_b32 v151, 0x60, v148
v_and_b32 v9, 7, v7
s_lshl_b32 s80, {sW}, 1
v_xor_b32 v9, s80, v9
v_lshlrev_b32 v9, 5, v9
v_lshl_add_u32 v9, v7, 8, v9
v_lshl_add_u32 v27, {vU}, 3, v9
v_xor_b32 v28, 32, v27
v_lshlrev_b32 v7, 1, {vG}
v_xor_b32 v144, {vN}, v7
v_lshlrev_b32 v144, 4, v144
v_lshl_add_u32 v144, {vG}, 8, v144
v_xor_b32 v145, 0x80, v144
v_lshlrev_b32 v7, 2, {vN}
v_lshl_add_u32 v29, {vG}, 13, v7
v_lshl_add_u32 v30, {vG}, 10, v7
v_lshl_add_u32 v7, {vG}, 8, v7
s_lshl_b32 s80, {sW}, 10
s_add_u32 s80, s80, {LRS}
v_add_u32 v147, s80, v7
v_add_u32 v161, 4096, v147
s_lshl_b32 s84, {sHKV}, 4
s_add_u32 s84, s84, {sLO}
s_lshl_b32 s84, s84, 3
s_add_u32 s84, s84, {sHI}
s_lshl_b32 s84, s84, 2
s_add_u32 s84, s84, {sW}
s_lshl_b32 s84, s84, 6
s_add_u32 s84, s84, {QP}
s_lshl_b32 s85, {sF0}, 1
s_lshr_b32 s80, {sW}, 1
s_add_u32 s85, s85, s80
s_lshl_b32 s85, s85, 5
s_add_u32 s85, s85, {sLO}
s_lshl_b32 s85, s85, 1
s_and_b32 s81, {sW}, 1
s_add_u32 s85, s85, s81
s_lshl_b32 s85, s85, 6
s_add_u32 s85, s85, {HP}
s_lshl_b32 s80, s80, 3
s_add_u32 s80, s80, s81
s_lshl_b32 s80, s80, 3
s_add_u32 s80, s80, {LP}
v_mul_u32_u24 v10, 576, {vG}
v_lshl_add_u32 v10, {vHB}, 7, v10
v_lshl_add_u32 v10, {vU}, 4, v10
v_add_u32 v10, s80, v10
v_mul_u32_u24 v11, 576, {vHB}
v_lshl_add_u32 v11, {vG}, 4, v11
v_add_u32 v11, {LP}, v11
v_lshlrev_b32 v31, 4, {vN}
v_lshl_add_u32 v31, {vG}, 11, v31
s_lshl_b32 s86, {sHKV}, 2
s_add_u32 s86, s86, {sLO}               ; 4*hkv+lo
s_lshl_b32 s87, s86, 4
s_add_u32 s87, s87, {sW}
s_lshl_b32 s87, s87, 9
s_add_u32 s87, s87, {QP}
s_lshl_b32 s88, s86, 2
s_add_u32 s88, s88, {sW}                ; (4*hkv+h)*4+w
s_lshl_b32 s89, s88, 8
s_add_u32 s89, s89, {sHI}
s_lshl_b32 s89, s89, 7
s_lshl_b32 s88, s88, 12
s_add_u32 s88, s88, {OP}                ; O gather
s_lshl_b32 s90, s90, 12
s_add_u32 s90, s90, {HP}                ; h gather
v_xor_b32 v7, {vG}, {vN}
v_lshlrev_b32 v7, 4, v7
v_lshl_add_u32 v7, {vU}, 10, v7
v_lshl_add_u32 v7, {vHB}, 14, v7
s_add_u32 s80, {sW4K}, {LK}
v_add_u32 v152, s80, v7
v_xor_b32 v153, 64, v152
v_xor_b32 v154, 0x80, v152
v_xor_b32 v155, 0xc0, v152
v_lshrrev_b32 v7, 1, {vG}
v_and_b32 v9, 1, {vG}
v_lshlrev_b32 v7, 7, v7
v_lshl_add_u32 v7, {vN}, 3, v7
v_lshl_add_u32 v7, v9, 2, v7
s_mul_i32 s80, {sW}, 320
s_add_u32 s80, s80, {LQ}
v_add_u32 v156, s80, v7
v_mul_u32_u24 v157, 320, {vHB}
v_lshl_add_u32 v157, {vG}, 4, v157
v_add_u32 v157, {LQ}, v157
v_lshlrev_b32 v8, 4, {vG}
v_add_u32 v8, {LMX}, v8
s_lshl_b32 s80, {sW}, 2
v_add_u32 v9, s80, v8
v_lshlrev_b32 v12, 4, {vU}
v_lshl_add_u32 v12, {vG}, 7, v12
v_lshl_add_u32 v12, {vHB}, 10, v12
v_lshlrev_b32 v158, 3, {vN}
v_lshl_add_u32 v158, {vG}, 14, v158
v_and_b32 v7, 1, {vU}
v_lshl_add_u32 v159, v7, 2, {vG}
v_lshl_add_u32 v159, {vHB}, 3, v159
v_lshlrev_b32 v159, 4, v159
v_mov_b32 v160, 0
s_lshl_b32 s80, {sLO}, 3
s_add_u32 s80, s80, {sHI}               ; 8*b+s
s_lshl_b32 s81, {sHKV}, 2
s_add_u32 s81, s81, {sW}
s_lshl_b32 s81, s81, 5
s_add_u32 s81, s81, s80
s_lshl_b32 s81, s81, 4
s_add_u32 s36, s81, {ST}
s_lshl_b32 s37, {sHKV}, 16
s_add_u32 s37, s37, {sW4K}
s_lshl_b32 s80, s80, 7
s_add_u32 s37, s37, s80
s_add_u32 s37, s37, {OP}                ; O publish
s_lshl_b32 s38, s86, 9
s_add_u32 s38, s38, {ST}
v_lshlrev_b32 v164, 4, {vL}
v_add_u32 v165, {LRS}, v164
v_and_b32 v18, 7, {vN}
v_bfe_u32 v19, {vL}, 3, 1
v_lshl_add_u32 v19, {vG}, 4, v19
v_mul_u32_u24 v19, 6144, v19
v_lshl_add_u32 v166, v18, 4, v19
v_lshl_add_u32 v18, v18, 2, {vG}
v_lshlrev_b32 v167, 1, v18
s_mul_i32 s39, {sHI}, 12288
s_lshl_b32 s80, s86, 7
s_add_u32 s39, s39, s80
s_add_u32 s39, s39, {SP}                ; s publish
s_mul_i32 s40, {sC2}, 12288
s_lshl_b32 s80, {sF1}, 7
s_add_u32 s40, s40, s80
s_add_u32 s40, s40, {SP + 4096}         ; g publish
s_sub_u32 s41, s2, 192
s_mul_i32 s42, s41, 6144
s_add_u32 s42, s42, {SP}
s_add_u32 s43, s42, 4096
s_lshl_b32 s83, s41, 6
s_mul_i32 s70, s70, 0x01010101
s_waitcnt lgkmcnt(0)
s_mov_b32 s71, s70
s_add_u32 {sE}, {sE}, 0x9d5b3701
s_and_b32 {sT[0]}, {sE}, 0xff
s_bfe_u32 {sT[1]}, {sE}, 0x80008
s_bfe_u32 {sT[2]}, {sE}, 0x80010
s_lshr_b32 {sT[3]}, {sE}, 24
v_lshlrev_b32 v7, 4, v7
v_lshrrev_b32 v142, v7, {sE}            ; O tags
v_lshrrev_b32 v143, 8, v142
v_lshlrev_b32 v7, 3, {vU}
v_lshrrev_b32 v141, v7, {sE}
""")
def fast_load():
    if P["FAST"] == 1: A("s_load_dwordx8 s[44:51], s[72:73], s92")
def fast_eval():
    if P["FAST"] != 1: return
    for i in range(44, 52, 2): A("s_xor_b64 s[%d:%d], s[%d:%d], s[70:71]" % (i, i + 1, i, i + 1))
    A(f"s_or_b64 s[44:45], s[44:45], s[46:47]\ns_or_b64 s[48:49], s[48:49], s[50:51]\ns_or_b64 s[44:45], s[44:45], s[48:49]\ns_cselect_b32 {sFAST}, 1, 0")
role_wait(NS + 4 + HEAD, 4, "L_xw", f"lg_u32 {sROLE}, 0")
stamp("x")
fast_load()
for i in range(4): A("v_lshlrev_b32 v%d, 16, v%d\nv_and_b32 v%d, 0xffff0000, v%d" % (32 + 2 * i, 20 + i, 33 + 2 * i, 20 + i))
A("v_readfirstlane_b32 s80, v32")
for i in range(8): A("v_subrev_f32 v%d, s80, v%d" % (44 + i, 32 + i))
A("v_add_f32 v40, v44, v45\nv_mul_f32 v42, v44, v44\nv_add_f32 v41, v46, v47\nv_mul_f32 v43, v45, v45")
for i in range(2, 8):
    A("v_fmac_f32 v%d, v%d, v%d" % (42 + i % 2, 44 + i, 44 + i))
    if i >= 4: A("v_add_f32 v%d, v%d, v%d" % (40 + i % 2, 40 + i % 2, 44 + i))
A("v_add_f32 v40, v40, v41\nv_add_f32 v42, v42, v43")
for c in ("quad_perm:[1,0,3,2]", "quad_perm:[2,3,0,1]", "row_half_mirror", "row_mirror"):
    for r in (40, 42): A("v_add_f32_dpp v%d, v%d, v%d %s %s" % (r, r, r, c, DPP))
for sw in ("16", "32"):
    A("v_mov_b32 v41, v40\nv_mov_b32 v43, v42\nv_permlane%s_swap_b32 v40, v41\nv_permlane%s_swap_b32 v42, v43\nv_add_f32 v40, v40, v41\nv_add_f32 v42, v42, v43" % (sw, sw))
A("v_mul_f32 v40, 0x3b000000, v40\nv_mul_f32 v42, 0x3b000000, v42\nv_fma_f32 v42, -v40, v40, v42\nv_add_f32 v40, s80, v40\nv_max_f32 v42, 0, v42")
rbf2(40, 42, 40, 42, 41)
A("v_add_f32 v42, 0x3727c5ac, v42"); rbf(42)
A("v_sqrt_f32 v42, v42")
for i in range(8): A("v_sub_f32 v%d, v%d, v40" % (32 + i, 32 + i))
rbf(42)
A("v_rcp_f32 v42, v42")
for i in range(4): rbf2(32 + 2 * i, 33 + 2 * i, 32 + 2 * i, 33 + 2 * i, 44 + i)
for i in range(8): A("v_mul_f32 v%d, v%d, v42" % (32 + i, 32 + i))
for i in range(4): A("v_cvt_pk_bf16_f32 v%d, v%d, v%d" % (20 + i, 32 + 2 * i, 33 + 2 * i))
A("ds_write_b128 v24, v[20:23]")
stamp("ln")
kv_dma(K, KO, LK, 0, HEAD, 4)
A("s_waitcnt lgkmcnt(0)")
fast_eval()
role_wait(4, 4, "L_wqw", f"lg_u32 {sROLE}, 0")
A("s_barrier")
stamp("wq")
for t in range(4): A("ds_read2_b64 %s, v25 offset0:%d offset1:%d" % (vr(32 + 4 * t, 4), 8 * t, 8 * t + 4))
def proj(addr, lds, voff, soff, lbl):
    for t in range(4):
        for h in range(2): A("ds_read_b64_tr_b16 %s, %s offset:%d" % (vr(48 + 4 * t + 2 * h, 2), addr, lds + t * 4096 + h * 2048))
    for t in range(4):
        A("s_waitcnt lgkmcnt(%d)" % (6 - 2 * t)); mfma(64, 48 + 4 * t, 32 + 4 * t, "0" if t == 0 else None)
    A(f"v_bfi_b32 v68, {vFF}, v141, v64")
    gstore(f"buffer_store_dword v68, {voff}, {WS}, {soff} offen", lbl)
proj("v26", LWQ, "v29", "s84", "L_qs")
stamp("qpub")
if STAMP: A(f"v_writelane_b32 v127, {sFAST}, 59")
kv_dma(K, KO, LK, 1)
A("s_waitcnt vmcnt(9)\ns_barrier")
A(f"s_cmp_eq_u32 {sROLE}, 1\ns_cbranch_scc0 L_noh")
proj("v146", 0, "v30", "s85", "L_hs")
A("L_noh:")
stamp("hpub")
def qgather(r=32):
    for i in range(2): A(f"buffer_load_dwordx4 {vr(r + 4 * i, 4)}, v31, {WS}, s87 offen offset:{256 * i} {PLD}")
def hgather():
    for i in range(2): A(f"buffer_load_dwordx4 {vr(132 + 4 * i, 4)}, v12, {WS}, s90 offen offset:{64 * i} {PLD}")
kv_dma(K, KO, LK, 2)
if P["PRE"]:
    A(f"s_cmp_lt_u32 s41, 64\ns_cbranch_scc0 L_nopre\nv_lshlrev_b32 v7, 7, {vL}\ns_mov_b32 exec_hi, 0x3fff\nbuffer_load_dword v7, v7, {WS}, s42 offen {PLD}\ns_mov_b32 exec_hi, -1\nL_nopre:")
kv_dma(K, KO, LK, 3)
if P["FAST"] == 1: A(f"v_and_b32 v18, 28, {vL}\nv_add_u32 v18, s92, v18\nglobal_load_dword v18, v18, s[72:73] sc1")
qgather()
stamp("qg_iss")
kv_dma(V, VO, LV, 0)
Q2 = 2 if P["QG2"] else 0
if Q2: qgather(40)
kv_dma(V, VO, LV, 1)
hgather()
kv_dma(V, VO, LV, 2)
stamp("v2_iss")
A("s_waitcnt vmcnt(%d)" % (14 + Q2))
for a in range(3):
    for j in range(4): A("ds_read_b128 %s, v%d offset:%d" % (vr(64 + 16 * a + 4 * j, 4), 152 + j, 256 * a))
if P["FAST"] == 1: A(f"v_cmp_ne_u32 vcc, s70, v18\ns_cmp_lg_u64 vcc, 0\ns_cselect_b32 {sFAST}, 1, 0")
if Q2:
    untag(32, 8, 48)
    A("s_cbranch_vccz L_qok\ns_mov_b64 exec, vcc\ns_waitcnt vmcnt(10)")
    for e in range(8): A("v_mov_b32 v%d, v%d" % (32 + e, 40 + e))
A("s_branch L_qchk\nL_qagain:")
qgather()
A("s_waitcnt vmcnt(0)\nL_qchk:")
untag(32, 8, 48)
retry("L_qagain", "L_qok")
stamp("q_ok")
rscatter8(32)
A("v_cvt_pk_bf16_f32 v32, v32, v33\nds_write_b32 v156, v32\ns_waitcnt lgkmcnt(0)\ns_barrier")
QB = 168
for j in range(4): A("ds_read_b128 %s, v157 offset:%d" % (vr(QB + 4 * j, 4), 64 * j))
for j in range(4): A("ds_read_b128 %s, v%d offset:%d" % (vr(112 + 4 * j, 4) if j < 3 else "v[128:131]", 152 + j, 256 * 3))
for j in range(4):
    A("s_waitcnt lgkmcnt(%d)" % (7 - j))
    for a in range(3): mfma(48 + 4 * a, 64 + 16 * a + 4 * j, QB + 4 * j, "0" if j == 0 else None)
A("s_waitcnt lgkmcnt(0)")
for j in range(4): mfma(60, 112 + 4 * j if j < 3 else 128, QB + 4 * j, "0" if j == 0 else None)
stamp("qk")
kv_dma(V, VO, LV, 3)
stamp("v3_iss")
rbf2(48, 49, 48, 52, 53); rbf2(50, 51, 56, 60, 54)
for e in range(4): A("v_mul_f32 v%d, 0x3db504f3, v%d" % (48 + e, 48 + e))
rbf2(48, 49, 48, 49, 52); rbf2(50, 51, 50, 51, 53)
A("v_max_f32 v52, v48, v49\nv_max3_f32 v52, v52, v50, v51")
ROW = ("quad_perm:[1,0,3,2]", "quad_perm:[2,3,0,1]", "row_half_mirror", "row_mirror")
for c in ROW: A("v_max_f32_dpp v52, v52, v52 %s %s" % (c, DPP))
A("ds_write_b32 v9, v52\ns_mov_b32 s80, 0x3fb8aa3b\ns_waitcnt lgkmcnt(0)\ns_barrier\nds_read_b128 v[52:55], v8\ns_waitcnt lgkmcnt(0)")
A("v_max_f32 v52, v52, v53\nv_max3_f32 v56, v52, v54, v55\nv_mul_f32 v52, 0xbfb8aa3b, v56")
for e in range(4): A("v_fma_f32 v%d, v%d, s80, v52" % (48 + e, 48 + e))
for e in range(4): A("v_exp_f32 v%d, v%d" % (48 + e, 48 + e))
A("v_add_f32 v52, v48, v49\nv_cvt_pk_bf16_f32 v54, v48, v49\nv_add_f32 v53, v50, v51\nv_cvt_pk_bf16_f32 v55, v50, v51\nv_add_f32 v52, v52, v53\nds_write_b64 v10, v[54:55]")
for c in ROW: A("v_add_f32_dpp v52, v52, v52 %s %s" % (c, DPP))
A("ds_write_b32 v9, v52 offset:64")
stamp("p_done")
def wreads(r, off):
    for mt in range(4):
        for h in range(2): A("ds_read_b64_tr_b16 %s, v%d offset:%d" % (vr(r + 4 * mt + 2 * h, 2), 148 + mt, off + h * 2048))
def wstage(a, b, addr):
    for mt in range(4): mfma(32 + 4 * mt, a + 4 * mt, b, "0")
    for mt in (0, 2): A("ds_write2_b32 %s, v%d, v%d offset0:%d offset1:%d" % (addr, 32 + 4 * mt, 36 + 4 * mt, 16 * mt, 16 * mt + 16))
A(f"s_cmp_eq_u32 {sROLE}, 2\ns_cbranch_scc0 L_noffn")
wreads(80, LF - LWO)
A("s_waitcnt vmcnt(8)\ns_branch L_hchk\nL_hagain:")
hgather()
A("s_waitcnt vmcnt(0)\nL_hchk:")
untag(132, 8, 140)
retry("L_hagain", "L_hok")
rscatter8(132)
A("v_max_f32 v132, 0, v132\nv_max_f32 v133, 0, v133\nv_cvt_pk_bf16_f32 v132, v132, v133")
quad_b(136, 132)
A("s_waitcnt lgkmcnt(0)")
wstage(80, 136, "v161")
A("L_noffn:")
stamp("ffn")
tile_dma(WO, "v13", "s89", 1024, LWO, (0, 8, 4, 12))
A("s_waitcnt vmcnt(8) lgkmcnt(0)\ns_barrier")
stamp("v012")
A("ds_read_b128 v[60:63], v8 offset:64")
def vreads(t, r):
    A("ds_read_b128 %s, v11 offset:%d" % (vr(64 + 4 * t, 4), 64 * t))
    vreads2(t, r)
def vreads2(t, r):
    for mt in range(2):
        for h in range(2): A("ds_read_b64_tr_b16 %s, v%d offset:%d" % (vr(r + 4 * mt + 2 * h, 2), 27 + mt, t * 8192 + h * 4096))
R3 = (96, 104, 112)
vreads(0, 96); vreads(1, 104)
A(f"v_mov_b32 v58, {sE}\nv_mov_b32 v59, {sE}\ns_lshl_b32 s80, {sW}, 4\ns_waitcnt lgkmcnt(10)")
A("v_add_f32 v60, v60, v61\nv_add_f32 v62, v62, v63")
vreads(2, 112)
A("v_add_f32 v57, v60, v62\ns_lshl_b64 exec, 1, s80")
gstore(f"buffer_store_dwordx4 v[56:59], v160, {WS}, s36 offen", "L_ss")
A("s_mov_b64 exec, -1")
for t in range(6):
    A("s_waitcnt lgkmcnt(%d)" % (10 if t < 4 else (7, 2)[t - 4]))
    for mt in range(2): mfma(40 + 4 * mt, R3[t % 3] + 4 * mt, 64 + 4 * t, "0" if t == 0 else None)
    if t + 3 < 6: vreads(t + 3, R3[t % 3])
    if t == 3: A("ds_read_b128 v[88:91], v11 offset:384\nds_read_b128 v[92:95], v11 offset:448")
def sgather(): A(f"buffer_load_dwordx4 v[184:187], v159, {WS}, s38 offen {PLD}")
sgather()
stamp("pv1")
A("s_waitcnt vmcnt(6)\ns_barrier")
stamp("v3")
vreads2(6, 96); vreads2(7, 104)
for t in (6, 7):
    A("s_waitcnt lgkmcnt(%d)" % (4 * (7 - t)))
    for mt in range(2): mfma(40 + 4 * mt, R3[t - 6] + 4 * mt, 64 + 4 * t)
A(f"v_bfi_b32 v48, {vFF}, v142, v40\nv_bfi_b32 v49, {vFF}, v143, v44")
gstore(f"buffer_store_dwordx2 v[48:49], v158, {WS}, s37 offen", "L_os")
stamp("o_pub")
def ogather():
    for sh in range(2):
        for i in range(2): A(f"buffer_load_dwordx4 {vr(64 + 8 * sh + 4 * i, 4)}, v12, {WS}, s88 offen offset:{512 * sh + 64 * i} {PLD}")
ogather()
A("s_waitcnt vmcnt(5)")
wreads(96, 0)
A("s_branch L_schk\nL_sagain:")
sgather()
A(f"s_waitcnt vmcnt(0)\nL_schk:\nv_bitop3_b32 v186, v186, v187, {sE} bitop3:0x7e\nv_cmp_ne_u32 vcc, 0, v186")
retry("L_sagain", "L_sok")
A(f"v_max_f32_dpp v60, v184, v184 quad_perm:[1,0,3,2] {DPP}")
allred_g("v_max_f32", 60, 61)
A("v_sub_f32 v60, v184, v60\nv_mul_f32 v60, 0x3fb8aa3b, v60\nv_exp_f32 v60, v60\nv_mul_f32 v61, v60, v185")
A(f"v_add_f32_dpp v61, v61, v61 quad_perm:[1,0,3,2] {DPP}")
allred_g("v_add_f32", 61, 62)
A("v_rcp_f32 v61, v61\nv_mul_f32 v60, v60, v61")
A(f"v_mov_b32_dpp v62, v60 quad_perm:[0,0,0,0] {DPP}\nv_mov_b32_dpp v63, v60 quad_perm:[1,1,1,1] {DPP}")
stamp("st_ok")
A("s_branch L_ow\nL_oagain:")
ogather()
A("L_ow:\ns_waitcnt vmcnt(0)")
untag(64, 16, 61)
retry("L_oagain", "L_ook")
stamp("o_ok")
for e in range(8): A("v_mul_f32 v%d, v%d, v62" % (64 + e, 64 + e))
for e in range(8): A("v_fmac_f32 v%d, v%d, v63" % (64 + e, 72 + e))
rscatter8(64, True)
A("v_cvt_pk_bf16_f32 v64, v64, v65")
quad_b(68, 64)
A("s_waitcnt lgkmcnt(0)")
wstage(96, 68, "v147")
A(f"v_add_u32 v165, {sW4K}, v165\ns_cmp_eq_u32 {sW}, 0\ns_cselect_b32 s39, s39, s40")
A("s_waitcnt lgkmcnt(0)\ns_barrier")
A(f"s_cmp_ge_u32 {sW}, 2\ns_cbranch_scc1 L_final\ns_lshl_b32 s80, {sW}, 1\ns_andn2_b32 s80, s80, {sROLE}\ns_cbranch_scc1 L_done")
for i in range(4): A("ds_read_b128 %s, v165 offset:%d" % (vr(32 + 4 * i, 4), 1024 * i))
A("s_waitcnt lgkmcnt(2)")
for e in range(4): A("v_add_f32 v%d, v%d, v%d" % (32 + e, 32 + e, 36 + e))
A("s_waitcnt lgkmcnt(0)")
for e in range(4): A("v_add_f32 v%d, v%d, v%d" % (40 + e, 40 + e, 44 + e))
for e in range(4): A("v_add_f32 v%d, v%d, v%d" % (32 + e, 32 + e, 40 + e))
tag(32)
A(f"buffer_store_dwordx4 v[32:35], v166, {WS}, s39 offen {PST}")
stamp("s_pub")
A("s_branch L_done")
A(f"L_final:\ns_cmp_eq_u32 {sW}, 2\ns_cbranch_scc0 L_done\ns_cmp_lt_u32 s41, 64\ns_cbranch_scc0 L_done")
A(f"buffer_load_ushort v60, v167, {X}, s83 offen")
A("L_fagain:")
for i in range(4): A(f"buffer_load_dwordx4 {vr(32 + 4 * i, 4)}, v164, {WS}, s42 offen offset:{1024 * i} {PLD}")
A(f"buffer_load_dwordx4 v[48:51], v164, {WS}, s43 offen {PLD}")
for e in range(4): A("v_mov_b32 v%d, %s" % (52 + e, sT[e]))
A(f"s_mov_b32 s80, exec_hi\ns_and_b32 exec_hi, exec_hi, 0xffff\ns_cbranch_execz L_fskip\nbuffer_load_dwordx4 v[52:55], v164, {WS}, s43 offen offset:1024 {PLD}\nL_fskip:\ns_mov_b32 exec_hi, s80")
A("s_waitcnt vmcnt(0)")
untag(32, 24, 61)
retry("L_fagain", "L_fok")
stamp("f_ok")
for e in range(4): A("v_add_f32 v%d, v%d, v%d" % (48 + e, 48 + e, 52 + e))
for e in range(8): A("v_add_f32 v%d, v%d, v%d" % (32 + e, 32 + e, 40 + e))
for e in range(4): A("v_add_f32 v%d, v%d, v%d" % (32 + e, 32 + e, 36 + e))
for r in (48, 32):
    for e in range(2): A("v_permlane32_swap_b32 v%d, v%d" % (r + e, r + 2 + e))
for r in (48, 32):
    for e in range(2): A("v_add_f32 v%d, v%d, v%d" % (r + e, r + e, r + 2 + e))
for r in (48, 32): A("v_permlane16_swap_b32 v%d, v%d" % (r, r + 1))
for r in (48, 32): A("v_add_f32 v%d, v%d, v%d" % (r, r, r + 1))
A("v_lshlrev_b32 v60, 16, v60")
for r in (48, 32): A("v_add_f32_dpp v%d, v%d, v%d row_ror:8 %s" % (r, r, r, DPP))
rbf2(48, 32, 48, 32, 33)
A("v_mul_f32 v49, 0xbfb8aa3b, v48\nv_exp_f32 v49, v49\nv_add_f32 v49, 1.0, v49\nv_rcp_f32 v49, v49\nv_mul_f32 v48, v48, v49")
rbf(48)
A("v_mul_f32 v32, v32, v48"); rbf(32)
A("v_add_f32 v32, v60, v32\nv_cvt_pk_bf16_f32 v32, v32, v32")
A(f"s_mov_b32 exec_lo, 0x00ff00ff\ns_mov_b32 exec_hi, 0x00ff00ff\nbuffer_store_short v32, v167, {OUT}, s83 offen")
A(f"s_cmp_eq_u32 s41, 0\ns_cbranch_scc0 L_done\nv_mov_b32 v33, {sE}\ns_mov_b64 exec, 1\nbuffer_store_dword v33, v160, {WS}, 0 offen")
A("L_done:")
if P["DIAG"]:
    stamp("end")
    A("s_sub_u32 s94, s94, s96\ns_lshl_b32 s94, s94, 2\ns_add_u32 s94, s94, 4000\nL_diag:\ns_memrealtime s[98:99]\ns_waitcnt lgkmcnt(0)\ns_sub_u32 s98, s98, s96\ns_cmp_lt_u32 s98, s94\ns_cbranch_scc1 L_diag")
if STAMP:
    A("s_mov_b64 exec, -1")
    stamp("end")
    A(f"v_writelane_b32 v127, {sSPIN}, 61\nv_writelane_b32 v127, {sFAST}, 60")
    A(f"s_lshl_b32 s80, s2, 10\ns_add_u32 s80, s80, {STP}\nv_lshlrev_b32 v7, 2, v0\nbuffer_store_dword v127, v7, {WS}, s80 offen")
A("L_end:\ns_endpgm")
hdr = open("recurrent_scan__sliding_block_cached__dense_activation_relu__decode.s.ref").read().split("; Override launch")[0]
print(hdr + "; @launch grid=(256,1,1) block=(256,1,1) lds=%d" % LDS_BYTES)
print('.amdgcn_target "amdgcn-amd-amdhsa--gfx950"\n.text\n.globl %s\n.p2align 8\n.type %s,@function\n%s:' % (KN, KN, KN))
print(A.text())
print('.section .rodata,"a"\n.p2align 6\n.amdhsa_kernel %s\n  .amdhsa_next_free_vgpr 192\n  .amdhsa_next_free_sgpr 102\n  .amdhsa_accum_offset 192\n  .amdhsa_group_segment_fixed_size 0\n  .amdhsa_kernarg_size 88\n  .amdhsa_user_sgpr_count 2\n  .amdhsa_user_sgpr_kernarg_segment_ptr 1\n  .amdhsa_system_sgpr_workgroup_id_x 1\n.end_amdhsa_kernel' % KN)
```

```python
import sys
from asmlib import Asm
KN = "recurrent_scan__sliding_block_cached__dense_activation_relu__decode_kernel"
P = dict(STS="", WOP=1, ROT=20992, FAST=1, V3E=0, LATE=1, PRE=0, TK=1, GE=1, QG2=1, KS="0+4+8", NK0=2, NV0=0, PKV="nt", PW="nt", STAMP=0, SPIN=200000, WARM=2, QX=0, PSTG="sc1", FINE=0, SLEEP=0, PST="sc1", PLD="sc1", K2E=1, DIAG="")
for a in sys.argv[1:]:
    k, v = a.split("=")
    P[k] = type(P[k])(v) if v != "def" else ""
PSTG = P["PSTG"]
PST, PLD = P["PST"].replace("_", " "), P["PLD"].replace("_", " ")
NK0, NV0, PKV, PW, STAMP = P["NK0"], P["NV0"], P["PKV"], P["PW"], P["STAMP"]
LV, LK, LF, LS = 0, 65536, 131072, 147456
LWQ, LWO = LV + 49152, LK + 49152
LXN = LS; LQ = LXN + 4352; LMX = LQ + 1280; LL = LMX + 64; LP = LL + 64; LRS = LP + 2304 + 128; LRG = LRS + 4096
LDS_BYTES = LRG + 4096
assert LRS % 256 == 0 and LDS_BYTES <= 163840
QP, HP, ST, OP, SP, WSZ = 0x1000, 0x41000, 0x79000, 0x80000, 0x100000, 0x160000
STP = 0x200000
TKB = 0x800
DPP = "row_mask:0xf bank_mask:0xf"
A = Asm()
nst = [0]
def stamp(name):
    if P["DIAG"] == name: A("s_memrealtime s[94:95]\ns_waitcnt lgkmcnt(0)")
    if not STAMP or (P["STS"] and name not in P["STS"].split("+")): return
    i = nst[0]; nst[0] += 1
    A("s_memrealtime s[98:99]\ns_waitcnt lgkmcnt(0)\nv_writelane_b32 v127, s98, %d ; stamp %s" % (i, name))
    print("stamp", i, name, file=sys.stderr)
X, WQ, K, V, WO, WF, WS, OUT = ("s[%d:%d]" % (i, i + 3) for i in range(4, 36, 4))
sW, sHKV, sLO, sHI, sROLE, sE = "s52", "s53", "s55", "s56", "s57", "s60"
sT = ["s61", "s62", "s63", "s64"]
sKV, sW4K = "s58", "s59"
sM0, sM1, sM2, sM3, sM01 = "s[66:67]", "s[68:69]", "s[70:71]", "s[72:73]", "s[74:75]"
sF0, sF1 = "s76", "s77"
sSPIN = "s78"
sKS, sHQ, sC2 = "s66", "s67", "s68"
vL, vN, vG, vU, vHB, vFF = "v1", "v2", "v3", "v4", "v5", "v6"
def vr(a, n): return "v[%d:%d]" % (a, a + n - 1)

def tile_dma(srd, voff, sbase, pitch, lds, rows=(0, 8, 16, 24)):
    A("s_add_u32 m0, %s, %d" % (sW4K, lds))
    for i in range(4):
        if i: A("s_add_i32 %s, %s, %d" % (sbase, sbase, (rows[i] - rows[i - 1]) * pitch - 1024))
        A("buffer_load_dwordx4 %s, %s, %s offen offset:%d %s lds" % (voff, srd, sbase, 1024 * i, PW))
def kv_dma(srd, voffs, lds, a, i0=0, i1=4):
    if i0 == i1: return
    if P["ROT"]: A("s_add_u32 m0, %s, %d\ns_xor_b32 s79, %s, %d" % (sW4K, lds + a * 16384, sKV, a * 16384))
    else: A("s_add_u32 m0, %s, %d\ns_add_u32 s79, %s, %d" % (sW4K, lds + a * 16384, sKV, a * 16384))
    for i in range(i0, i1):
        A("buffer_load_dwordx4 %s, %s, s79 offen offset:%d %s lds" % (voffs[i % len(voffs)], srd, 1024 * i, PKV))
    if srd == K and a < 3 and i1 == 4:
        for v in voffs: A("v_xor_b32 %s, %d, %s" % (v, (a ^ (a + 1)) << 6, v))
def tag(r):
    for e in range(4): A("v_bfi_b32 v%d, %s, %s, v%d" % (r + e, vFF, sT[e], r + e))
def untag(r, n, t):
    for e in range(n): A("v_xor_b32 v%d, %s, v%d" % (r + e, sT[e % 4], r + e))
    A("v_or3_b32 v%d, v%d, v%d, v%d" % (t, r, r + 1, r + 2))
    i = 3
    while i + 1 < n:
        A("v_or3_b32 v%d, v%d, v%d, v%d" % (t, t, r + i, r + i + 1)); i += 2
    A("v_bitop3_b32 v%d, v%d, v%d, %s bitop3:0xa8" % (t, t, r + i, vFF))
    A("v_cmp_ne_u32 vcc, 0, v%d" % t)
def retry(lbl_again, lbl_ok):
    A("s_cbranch_vccz %s\ns_mov_b64 exec, vcc\n" % lbl_ok + ("s_sleep %d\n" % P["SLEEP"] if P["SLEEP"] else "") + "s_add_u32 %s, %s, 1\ns_cmp_lt_u32 %s, %d\ns_cbranch_scc1 %s\n%s:" % (sSPIN, sSPIN, sSPIN, P["SPIN"], lbl_again, lbl_ok))
    A("s_mov_b64 exec, -1")
def rscatter8(r, alt=False):
    for e in range(4): A("v_permlane32_swap_b32 v%d, v%d" % (r + e, r + 4 + e))
    for e in range(4): A("v_add_f32 v%d, v%d, v%d" % (r + e, r + e, r + 4 + e))
    pr = ((0, 1), (2, 3)) if alt else ((0, 2), (1, 3))
    for a, b in pr: A("v_permlane16_swap_b32 v%d, v%d" % (r + a, r + b))
    for e, (a, b) in enumerate(pr): A("v_add_f32 v%d, v%d, v%d" % (r + e, r + a, r + b))
def allred_g(op, r, t):
    A("v_mov_b32 v%d, v%d\nv_permlane16_swap_b32 v%d, v%d\n%s v%d, v%d, v%d" % (t, r, r, t, op, r, r, t))
    A("v_mov_b32 v%d, v%d\nv_permlane32_swap_b32 v%d, v%d\n%s v%d, v%d, v%d" % (t, r, r, t, op, r, r, t))
def allred64(r, t):
    for c in ("quad_perm:[1,0,3,2]", "quad_perm:[2,3,0,1]", "row_half_mirror", "row_mirror"):
        A("v_add_f32_dpp v%d, v%d, v%d %s %s" % (r, r, r, c, DPP))
    allred_g("v_add_f32", r, t)
def rbf(r):
    A("v_cvt_pk_bf16_f32 v%d, v%d, v%d\nv_and_b32 v%d, 0xffff0000, v%d" % (r, r, r, r, r))
def rbf2(d0, d1, a, b, t):
    A("v_cvt_pk_bf16_f32 v%d, v%d, v%d\nv_lshlrev_b32 v%d, 16, v%d\nv_and_b32 v%d, 0xffff0000, v%d" % (t, a, b, d0, t, d1, t))
def quad_b(dst, src):
    for i, r in enumerate((0, 1, 2, 3)):
        A("v_mov_b32_dpp v%d, v%d quad_perm:[%d,%d,%d,%d] %s" % (dst + i, src, r, r, r, r, DPP))
def mfma(d, a, b, c=None):
    A("v_mfma_f32_16x16x32_bf16 %s, %s, %s, %s" % (vr(d, 4), vr(b, 4), vr(a, 4), vr(d, 4) if c is None else c))

sFAST = "s69"
def gstore(ins, lbl):
    if P["FAST"] == 0: A(ins + " sc1"); return
    if P["FAST"] == 2: A(ins); return
    A(f"s_cmp_eq_u32 {sFAST}, 0\ns_cbranch_scc1 {lbl}_f\n{ins} sc1\ns_branch {lbl}_e\n{lbl}_f:\n{ins}\n{lbl}_e:")
def role_wait(n, extra, lbl, role, tail=""):
    A(f"s_cmp_{role}\ns_cbranch_scc1 {lbl}\ns_waitcnt vmcnt({n})\n{lbl}:\ns_waitcnt vmcnt({n + extra}) {tail}")
if STAMP or P["DIAG"]: A("s_memrealtime s[96:97]\ns_memrealtime s[94:95]")
A("s_load_dwordx16 s[36:51], s[0:1], 0\ns_load_dwordx4 s[72:75], s[0:1], 72\ns_load_dwordx2 s[32:33], s[0:1], 64")
A("s_cmp_ge_u32 s2, 256\ns_cbranch_scc1 L_end")
def warm():
    A("s_getpc_b64 s[80:81]\nL_pc:\nv_lshlrev_b32 v7, 7, v0\nv_mov_b32 v163, s81\nv_add_co_u32 v162, vcc, s80, v7\ns_nop 1\nv_addc_co_u32 v163, vcc, 0, v163, vcc")
    A("v_cmp_gt_u32 vcc, L_end-L_pc, v7\ns_and_b64 exec, vcc, vcc\ns_cbranch_scc0 L_nowarm\nglobal_load_dword v162, v[162:163], off\nL_nowarm:\ns_mov_b64 exec, -1")
if P["WARM"] == 2: warm()
A(f"""
v_lshrrev_b32 v7, 6, v0
v_and_b32 {vL}, 63, v0
v_readfirstlane_b32 {sW}, v7
v_lshlrev_b32 v8, 4, v0                 ; x offset
v_lshrrev_b32 {vG}, 4, {vL}
s_and_b32 {sHKV}, s2, 7
s_bfe_u32 {sLO}, s2, 0x20003
s_lshr_b32 {sHI}, s2, 5
s_mov_b32 s6, 4096
s_mov_b32 s7, 0x20000
s_mov_b32 s10, 0x400000
s_mov_b32 s11, 0x20000
s_mov_b32 s14, 0x4000000
s_mov_b32 s15, 0x20000
s_mov_b32 s26, 1835008
s_mov_b32 s27, 0x20000
s_lshl_b32 {sW4K}, {sW}, 12
v_lshrrev_b32 v9, 3, {vL}
v_and_b32 v10, 7, {vL}
v_lshlrev_b32 v7, 1, {vG}
v_xor_b32 v10, v10, v7
v_lshlrev_b32 v10, 4, v10
v_lshl_add_u32 v11, v9, 13, v10
v_mul_u32_u24 v12, 3584, v9
v_add_u32 v12, v12, v10                 ; w1 voffset
v_lshrrev_b32 v7, 2, v9
v_and_b32 v13, 2, v9
v_add_u32 v13, v13, v7
v_and_b32 v18, 1, v9
v_lshl_add_u32 v13, v13, 1, v18
v_lshl_add_u32 v13, v13, 10, v10
v_lshlrev_b32 v14, 4, {vL}
v_xor_b32 v15, 16, v14
v_xor_b32 v16, 32, v14
v_xor_b32 v17, 48, v14
s_lshl_b32 s80, {sLO}, 2
s_add_u32 s80, s80, {sW}
s_lshl_b32 s81, s80, 18
s_lshl_b32 s82, {sHKV}, 3
s_add_u32 s82, s82, {sHI}
s_lshl_b32 s82, s82, 7
s_add_u32 s81, s81, s82
s_lshl_b32 {sF0}, {sHKV}, 2
s_add_u32 {sF0}, {sF0}, {sHI}
s_mul_i32 s83, s80, 114688
s_lshl_b32 s82, {sF0}, 7
s_add_u32 s83, s83, s82                 ; w1 base
s_bfe_u32 {sC2}, s2, 0x30003
s_bfe_u32 {sF1}, s2, 0x10006
s_lshl_b32 s82, {sHKV}, 1
s_add_u32 {sF1}, {sF1}, s82
s_lshl_b32 s90, {sF1}, 2
s_add_u32 s90, s90, {sW}                ; 4*rb+w
s_lshl_b32 s91, s90, 8
s_add_u32 s91, s91, {sC2}
s_lshl_b32 s91, s91, 7                  ; w2 base
s_lshl_b32 {sKV}, {sLO}, 3
s_add_u32 {sKV}, {sKV}, {sHKV}
s_lshl_b32 {sKV}, {sKV}, 5
s_add_u32 {sKV}, {sKV}, {sHI}
s_lshl_b32 {sKV}, {sKV}, 16
s_add_u32 {sKV}, {sKV}, {sW4K}
s_add_u32 {sKV}, {sKV}, 0x180000
s_mul_i32 s82, s2, {P["ROT"]}
s_and_b32 s82, s82, 0xf000
s_xor_b32 {sKV}, {sKV}, s82
s_getreg_b32 s70, hwreg(HW_REG_XCC_ID, 0, 4)
s_or_b32 s70, s70, 0x80
s_lshl_b32 s92, {sHKV}, 5
s_lshr_b32 s93, s2, 3
s_add_u32 s93, s93, s92
v_mov_b32 v19, s70
v_mov_b32 v18, s93
s_cmp_lt_u32 s2, 128
s_cselect_b32 {sROLE}, 1, 2
s_cmp_lt_u32 {sHKV}, 7
s_cselect_b32 {sROLE}, {sROLE}, 0
s_cmp_lt_u32 s2, 128
{"s_memrealtime s[94:95]" if STAMP else ""}
s_waitcnt lgkmcnt(0)
{"s_memrealtime s[100:101]" if STAMP else ""}
s_cselect_b64 s[24:25], s[48:49], s[50:51]
s_mov_b64 s[4:5], s[36:37]
s_mov_b64 s[8:9], s[42:43]
buffer_load_dwordx4 v[20:23], v8, {X}, 0 offen
s_load_dword {sE}, s[74:75], 0
s_mov_b64 s[12:13], s[38:39]
""")
NS = 0
if P["FAST"] == 1:
    A(f"s_cmp_eq_u32 {sW}, 0\ns_cbranch_scc0 L_nox\ns_mov_b64 exec, 1\nglobal_store_byte v18, v19, s[72:73]\ns_mov_b64 exec, -1\nL_nox:")
tile_dma(WQ, "v11", "s81", 8192, LWQ)
A(f"s_cmp_eq_u32 {sROLE}, 1\ns_cbranch_scc0 L_now1")
tile_dma(WF, "v12", "s83", 3584, LF)
A(f"L_now1:\ns_cmp_eq_u32 {sROLE}, 2\ns_cbranch_scc0 L_now2")
tile_dma(WF, "v13", "s91", 1024, LF, (0, 16, 8, 24))
A("L_now2:")
KO = ["v14", "v15", "v16", "v17"]; VO = ["v144", "v145"]
KS = [int(x) for x in P["KS"].split("+")] + [16]
HEAD = KS[0]
def k_issue(p0, p1):
    while p0 < p1:
        a = p0 // 4; e = min(p1, 4 * a + 4)
        kv_dma(K, KO, LK, a, p0 - 4 * a, e - 4 * a); p0 = e
k_issue(0, HEAD)
if P["WARM"] == 1: warm()
if STAMP: A("v_mov_b32 v127, 0\nv_writelane_b32 v127, s96, 63\nv_writelane_b32 v127, s70, 62\ns_getreg_b32 s98, hwreg(HW_REG_HW_ID)\nv_writelane_b32 v127, s98, 58")
stamp("issued0")
if STAMP and "ka" in P["STS"]:
    for n, r in (("pre_ka", "s94"), ("ka", "s100")):
        A("v_writelane_b32 v127, %s, %d ; stamp %s" % (r, nst[0], n)); nst[0] += 1
A(f"""
s_mov_b64 s[16:17], s[40:41]
s_mov_b32 s18, 0x4000000
s_mov_b32 s19, 0x20000
s_mov_b64 s[20:21], s[44:45]
s_mov_b32 s22, 0x400000
s_mov_b32 s23, 0x20000
s_mov_b64 s[28:29], s[74:75]
s_mov_b32 s30, {0x400000 if STAMP else WSZ}
s_mov_b32 s31, 0x20000
s_mov_b32 s34, 4096
s_mov_b32 s35, 0x20000
s_mov_b32 {sSPIN}, 0
v_and_b32 {vN}, 15, {vL}
v_and_b32 {vU}, 3, {vL}
v_bfe_u32 {vHB}, {vL}, 2, 2
v_mov_b32 {vFF}, 0xff
s_mul_i32 s80, {sW}, 1088
s_add_u32 s80, s80, {LXN}
v_lshl_add_u32 v24, {vL}, 4, s80
s_lshl_b32 s80, {sLO}, 8
s_add_u32 s80, s80, {LXN}
v_mul_u32_u24 v25, 1088, {vHB}
v_lshl_add_u32 v25, {vG}, 3, v25
v_add_u32 v25, s80, v25
v_lshrrev_b32 v7, 2, v9
v_and_b32 v13, 3, v9
v_lshl_add_u32 v13, v7, 4, v13
v_lshl_add_u32 v13, v13, 10, v10
v_lshl_add_u32 v7, {vG}, 2, {vHB}
v_bfe_u32 v9, v7, 1, 2
v_lshlrev_b32 v9, 5, v9
v_lshl_add_u32 v9, v7, 7, v9
v_lshl_add_u32 v9, {vU}, 3, v9
s_lshl_b32 s80, {sW}, 5
v_xor_b32 v26, s80, v9
v_add_u32 v146, {LF}, v26               ; w1
s_add_u32 s80, {sW4K}, {LWO}
v_add_u32 v148, s80, v9
v_xor_b32 v149, 32, v148
v_xor_b32 v150, 64, v148
v_xor_b32 v151, 0x60, v148
v_lshlrev_b32 v7, 2, {vN}
v_lshl_add_u32 v29, {vG}, 13, v7
v_lshl_add_u32 v30, {vG}, 10, v7
v_lshl_add_u32 v7, {vG}, 8, v7
s_lshl_b32 s80, {sW}, 10
s_add_u32 s80, s80, {LRS}
v_add_u32 v147, s80, v7
v_add_u32 v161, 4096, v147
s_lshl_b32 s84, {sHKV}, 4
s_add_u32 s84, s84, {sLO}
s_lshl_b32 s84, s84, 3
s_add_u32 s84, s84, {sHI}
s_lshl_b32 s84, s84, 2
s_add_u32 s84, s84, {sW}
s_lshl_b32 s84, s84, 6
s_add_u32 s84, s84, {QP}
s_lshl_b32 s85, {sF0}, 1
s_lshr_b32 s80, {sW}, 1
s_add_u32 s85, s85, s80
s_lshl_b32 s85, s85, 5
s_add_u32 s85, s85, {sLO}
s_lshl_b32 s85, s85, 1
s_and_b32 s81, {sW}, 1
s_add_u32 s85, s85, s81
s_lshl_b32 s85, s85, 6
s_add_u32 s85, s85, {HP}
s_mul_i32 s70, s70, 0x01010101
s_waitcnt lgkmcnt(0)
s_mov_b32 s71, s70
s_add_u32 {sE}, {sE}, 0x9d5b3701
s_and_b32 {sT[0]}, {sE}, 0xff
s_bfe_u32 {sT[1]}, {sE}, 0x80008
s_bfe_u32 {sT[2]}, {sE}, 0x80010
s_lshr_b32 {sT[3]}, {sE}, 24
v_lshlrev_b32 v7, 3, {vU}
v_lshrrev_b32 v141, v7, {sE}
""")
def late_setup():
    A(f"""
v_lshl_add_u32 v7, {vG}, 2, {vHB}
v_and_b32 v9, 7, v7
s_lshl_b32 s80, {sW}, 1
v_xor_b32 v9, s80, v9
v_lshlrev_b32 v9, 5, v9
v_lshl_add_u32 v9, v7, 8, v9
v_lshl_add_u32 v27, {vU}, 3, v9
v_xor_b32 v28, 32, v27
v_lshlrev_b32 v7, 1, {vG}
v_xor_b32 v144, {vN}, v7
v_lshlrev_b32 v144, 4, v144
v_lshl_add_u32 v144, {vG}, 8, v144
v_xor_b32 v145, 0x80, v144
s_lshr_b32 s80, {sW}, 1
s_and_b32 s81, {sW}, 1
s_lshl_b32 s80, s80, 3
s_add_u32 s80, s80, s81
s_lshl_b32 s80, s80, 3
s_add_u32 s80, s80, {LP}
v_mul_u32_u24 v10, 576, {vG}
v_lshl_add_u32 v10, {vHB}, 7, v10
v_lshl_add_u32 v10, {vU}, 4, v10
v_add_u32 v10, s80, v10
v_mul_u32_u24 v11, 576, {vHB}
v_lshl_add_u32 v11, {vG}, 4, v11
v_add_u32 v11, {LP}, v11
v_lshlrev_b32 v31, 4, {vN}
v_lshl_add_u32 v31, {vG}, 11, v31
s_lshl_b32 s86, {sHKV}, 2
s_add_u32 s86, s86, {sLO}               ; 4*hkv+lo
s_lshl_b32 s87, s86, 4
s_add_u32 s87, s87, {sW}
s_lshl_b32 s87, s87, 9
s_add_u32 s87, s87, {QP}
s_lshl_b32 s88, s86, 2
s_add_u32 s88, s88, {sW}                ; (4*hkv+h)*4+w
s_lshl_b32 s89, s88, 8
s_add_u32 s89, s89, {sHI}
s_lshl_b32 s89, s89, 7
s_lshl_b32 s88, s88, 12
s_add_u32 s88, s88, {OP}                ; O gather
s_lshl_b32 s90, s90, 12
s_add_u32 s90, s90, {HP}                ; h gather
v_xor_b32 v7, {vG}, {vN}
v_lshlrev_b32 v7, 4, v7
v_lshl_add_u32 v7, {vU}, 10, v7
v_lshl_add_u32 v7, {vHB}, 14, v7
s_add_u32 s80, {sW4K}, {LK}
v_add_u32 v152, s80, v7
v_xor_b32 v153, 64, v152
v_xor_b32 v154, 0x80, v152
v_xor_b32 v155, 0xc0, v152
v_lshrrev_b32 v7, 1, {vG}
v_and_b32 v9, 1, {vG}
v_lshlrev_b32 v7, 7, v7
v_lshl_add_u32 v7, {vN}, 3, v7
v_lshl_add_u32 v7, v9, 2, v7
s_mul_i32 s80, {sW}, 320
s_add_u32 s80, s80, {LQ}
v_add_u32 v156, s80, v7
v_mul_u32_u24 v157, 320, {vHB}
v_lshl_add_u32 v157, {vG}, 4, v157
v_add_u32 v157, {LQ}, v157
v_lshlrev_b32 v8, 4, {vG}
v_add_u32 v8, {LMX}, v8
s_lshl_b32 s80, {sW}, 2
v_add_u32 v9, s80, v8
v_lshlrev_b32 v12, 4, {vU}
v_lshl_add_u32 v12, {vG}, 7, v12
v_lshl_add_u32 v12, {vHB}, 10, v12
v_lshlrev_b32 v158, 3, {vN}
v_lshl_add_u32 v158, {vG}, 14, v158
v_and_b32 v7, 1, {vU}
v_lshl_add_u32 v159, v7, 2, {vG}
v_lshl_add_u32 v159, {vHB}, 3, v159
v_lshlrev_b32 v159, 4, v159
v_mov_b32 v160, 0
s_lshl_b32 s80, {sLO}, 3
s_add_u32 s80, s80, {sHI}               ; 8*b+s
s_lshl_b32 s81, {sHKV}, 2
s_add_u32 s81, s81, {sW}
s_lshl_b32 s81, s81, 5
s_add_u32 s81, s81, s80
s_lshl_b32 s81, s81, 4
s_add_u32 s36, s81, {ST}
s_lshl_b32 s37, {sHKV}, 16
s_add_u32 s37, s37, {sW4K}
s_lshl_b32 s80, s80, 7
s_add_u32 s37, s37, s80
s_add_u32 s37, s37, {OP}                ; O publish
s_lshl_b32 s38, s86, 9
s_add_u32 s38, s38, {ST}
v_lshlrev_b32 v164, 4, {vL}
v_add_u32 v165, {LRS}, v164
v_and_b32 v18, 7, {vN}
v_bfe_u32 v19, {vL}, 3, 1
v_lshl_add_u32 v19, {vG}, 4, v19
v_mul_u32_u24 v19, 6144, v19
v_lshl_add_u32 v166, v18, 4, v19
v_lshl_add_u32 v18, v18, 2, {vG}
v_lshlrev_b32 v167, 1, v18
s_mul_i32 s39, {sHI}, 12288
s_lshl_b32 s80, s86, 7
s_add_u32 s39, s39, s80
s_add_u32 s39, s39, {SP}                ; s publish
s_mul_i32 s40, {sC2}, 12288
s_lshl_b32 s80, {sF1}, 7
s_add_u32 s40, s40, s80
s_add_u32 s40, s40, {SP + 4096}         ; g publish
s_sub_u32 s41, s2, 192
s_mul_i32 s42, s41, 6144
s_add_u32 s42, s42, {SP}
s_add_u32 s43, s42, 4096
s_lshl_b32 s83, s41, 6
v_lshlrev_b32 v7, 4, v7
v_lshrrev_b32 v142, v7, {sE}            ; O tags
v_lshrrev_b32 v143, 8, v142
""")
if not P["LATE"]: late_setup()
def fast_load():
    if P["FAST"] == 1: A("s_load_dwordx8 s[44:51], s[72:73], s92")
def fast_eval():
    if P["FAST"] != 1: return
    for i in range(44, 52, 2): A("s_xor_b64 s[%d:%d], s[%d:%d], s[70:71]" % (i, i + 1, i, i + 1))
    A(f"s_or_b64 s[44:45], s[44:45], s[46:47]\ns_or_b64 s[48:49], s[48:49], s[50:51]\ns_or_b64 s[44:45], s[44:45], s[48:49]\ns_cselect_b32 {sFAST}, 1, 0")
role_wait(NS + 4 + HEAD, 4, "L_xw", f"lg_u32 {sROLE}, 0")
stamp("x")
fast_load()
for i in range(4): A("v_lshlrev_b32 v%d, 16, v%d\nv_and_b32 v%d, 0xffff0000, v%d" % (32 + 2 * i, 20 + i, 33 + 2 * i, 20 + i))
A("v_readfirstlane_b32 s80, v32")
for i in range(8): A("v_subrev_f32 v%d, s80, v%d" % (44 + i, 32 + i))
A("v_add_f32 v40, v44, v45\nv_mul_f32 v42, v44, v44\nv_add_f32 v41, v46, v47\nv_mul_f32 v43, v45, v45")
for i in range(2, 8):
    A("v_fmac_f32 v%d, v%d, v%d" % (42 + i % 2, 44 + i, 44 + i))
    if i >= 4: A("v_add_f32 v%d, v%d, v%d" % (40 + i % 2, 40 + i % 2, 44 + i))
A("v_add_f32 v40, v40, v41\nv_add_f32 v42, v42, v43")
for c in ("quad_perm:[1,0,3,2]", "quad_perm:[2,3,0,1]", "row_half_mirror", "row_mirror"):
    for r in (40, 42): A("v_add_f32_dpp v%d, v%d, v%d %s %s" % (r, r, r, c, DPP))
for sw in ("16", "32"):
    A("v_mov_b32 v41, v40\nv_mov_b32 v43, v42\nv_permlane%s_swap_b32 v40, v41\nv_permlane%s_swap_b32 v42, v43\nv_add_f32 v40, v40, v41\nv_add_f32 v42, v42, v43" % (sw, sw))
A("v_mul_f32 v40, 0x3b000000, v40\nv_mul_f32 v42, 0x3b000000, v42\nv_fma_f32 v42, -v40, v40, v42\nv_add_f32 v40, s80, v40\nv_max_f32 v42, 0, v42")
rbf2(40, 42, 40, 42, 41)
A("v_add_f32 v42, 0x3727c5ac, v42"); rbf(42)
A("v_sqrt_f32 v42, v42")
for i in range(8): A("v_sub_f32 v%d, v%d, v40" % (32 + i, 32 + i))
rbf(42)
A("v_rcp_f32 v42, v42")
for i in range(4): rbf2(32 + 2 * i, 33 + 2 * i, 32 + 2 * i, 33 + 2 * i, 44 + i)
for i in range(8): A("v_mul_f32 v%d, v%d, v42" % (32 + i, 32 + i))
for i in range(4): A("v_cvt_pk_bf16_f32 v%d, v%d, v%d" % (20 + i, 32 + 2 * i, 33 + 2 * i))
A("ds_write_b128 v24, v[20:23]")
stamp("ln")
k_issue(KS[0], KS[1])
A("s_waitcnt lgkmcnt(0)")
fast_eval()
role_wait(KS[1], 4, "L_wqw", f"lg_u32 {sROLE}, 0")
A("s_barrier")
stamp("wq")
for t in range(4): A("ds_read2_b64 %s, v25 offset0:%d offset1:%d" % (vr(32 + 4 * t, 4), 8 * t, 8 * t + 4))
def proj(addr, lds, voff, soff, lbl):
    for t in range(4):
        for h in range(2): A("ds_read_b64_tr_b16 %s, %s offset:%d" % (vr(48 + 4 * t + 2 * h, 2), addr, lds + t * 4096 + h * 2048))
    for t in range(4):
        A("s_waitcnt lgkmcnt(%d)" % (6 - 2 * t)); mfma(64, 48 + 4 * t, 32 + 4 * t, "0" if t == 0 else None)
    A(f"v_bfi_b32 v68, {vFF}, v141, v64")
    gstore(f"buffer_store_dword v68, {voff}, {WS}, {soff} offen", lbl)
proj("v26", LWQ, "v29", "s84", "L_qs")
stamp("qpub")
if STAMP: A(f"v_writelane_b32 v127, {sFAST}, 59")
if P["TK"]:
    A(f"s_and_b32 s44, {sE}, 0xffffff00\ns_lshl_b32 s45, {sHI}, 1\ns_add_u32 s45, s45, {sW}\ns_lshl_b32 s45, s45, 7\ns_add_u32 s45, s45, {TKB - 256}")
    A(f"s_lshl_b32 s80, s2, 2\ns_add_u32 s80, s80, {sW}\ns_cmp_eq_u32 s80, 1021\ns_cbranch_scc0 L_notk\nv_mov_b32 v69, s44\nv_lshlrev_b32 v70, 7, {vL}\ns_mov_b64 exec, 0xffff")
    A(f"buffer_store_dword v69, v70, {WS}, 0 offen offset:{TKB} sc1\ns_mov_b64 exec, -1\nL_notk:")
k_issue(KS[1], KS[2])
if P["LATE"]: late_setup()
A("s_waitcnt vmcnt(%d)\ns_barrier" % (KS[2] + 1))
A(f"s_cmp_eq_u32 {sROLE}, 1\ns_cbranch_scc0 L_noh")
proj("v146", 0, "v30", "s85", "L_hs")
A("L_noh:")
stamp("hpub")
def qgather(r=32):
    for i in range(2): A(f"buffer_load_dwordx4 {vr(r + 4 * i, 4)}, v31, {WS}, s87 offen offset:{256 * i} {PLD}")
def hgather():
    for i in range(2): A(f"buffer_load_dwordx4 {vr(132 + 4 * i, 4)}, v12, {WS}, s90 offen offset:{64 * i} {PLD}")
k_issue(KS[2], 16)
seq = []
Q2 = P["QG2"]
for a in range(3):
    if a == NV0:
        if P["FAST"] == 1: A(f"v_and_b32 v18, 28, {vL}\nv_add_u32 v18, s92, v18\nglobal_load_dword v18, v18, s[72:73] sc1")
        qgather(); seq += ["q1"] * 2
        stamp("qg_iss")
    if Q2 and a == NV0 + 1: qgather(40); seq += ["q2"] * 2
    if a == 2: hgather(); seq += ["h"] * 2
    kv_dma(V, VO, LV, a); seq += ["v"] * 4
V3E = P["V3E"]
if V3E: kv_dma(V, VO, LV, 3); seq += ["v"] * 4
stamp("v2_iss")
A("s_waitcnt vmcnt(%d)" % seq[::-1].index("q1"))
for a in range(3):
    for j in range(4): A("ds_read_b128 %s, v%d offset:%d" % (vr(64 + 16 * a + 4 * j, 4), 152 + j, 256 * a))
if P["FAST"] == 1: A(f"v_cmp_ne_u32 vcc, s70, v18\ns_cmp_lg_u64 vcc, 0\ns_cselect_b32 {sFAST}, 1, 0")
if Q2:
    untag(32, 8, 48)
    A("s_cbranch_vccz L_qok\ns_mov_b64 exec, vcc\ns_waitcnt vmcnt(%d)" % seq[::-1].index("q2"))
    for e in range(8): A("v_mov_b32 v%d, v%d" % (32 + e, 40 + e))
A("s_branch L_qchk\nL_qagain:")
qgather()
A("s_waitcnt vmcnt(0)\nL_qchk:")
untag(32, 8, 48)
retry("L_qagain", "L_qok")
stamp("q_ok")
rscatter8(32)
A("v_cvt_pk_bf16_f32 v32, v32, v33\nds_write_b32 v156, v32\ns_waitcnt lgkmcnt(0)\ns_barrier")
QB = 168
for j in range(4): A("ds_read_b128 %s, v157 offset:%d" % (vr(QB + 4 * j, 4), 64 * j))
for j in range(4): A("ds_read_b128 %s, v%d offset:%d" % (vr(112 + 4 * j, 4) if j < 3 else "v[128:131]", 152 + j, 256 * 3))
for j in range(4):
    A("s_waitcnt lgkmcnt(%d)" % (7 - j))
    for a in range(3): mfma(48 + 4 * a, 64 + 16 * a + 4 * j, QB + 4 * j, "0" if j == 0 else None)
A("s_waitcnt lgkmcnt(0)")
for j in range(4): mfma(60, 112 + 4 * j if j < 3 else 128, QB + 4 * j, "0" if j == 0 else None)
stamp("qk")
if not V3E: kv_dma(V, VO, LV, 3)
stamp("v3_iss")
def wo_dma(pos):
    if P["WOP"] == pos: tile_dma(WO, "v13", "s89", 1024, LWO, (0, 8, 4, 12))
wo_dma(0)
rbf2(48, 49, 48, 52, 53); rbf2(50, 51, 56, 60, 54)
for e in range(4): A("v_mul_f32 v%d, 0x3db504f3, v%d" % (48 + e, 48 + e))
rbf2(48, 49, 48, 49, 52); rbf2(50, 51, 50, 51, 53)
A("v_max_f32 v52, v48, v49\nv_max3_f32 v52, v52, v50, v51")
ROW = ("quad_perm:[1,0,3,2]", "quad_perm:[2,3,0,1]", "row_half_mirror", "row_mirror")
for c in ROW: A("v_max_f32_dpp v52, v52, v52 %s %s" % (c, DPP))
A("ds_write_b32 v9, v52\ns_mov_b32 s80, 0x3fb8aa3b\ns_waitcnt lgkmcnt(0)\ns_barrier\nds_read_b128 v[52:55], v8\ns_waitcnt lgkmcnt(0)")
A("v_max_f32 v52, v52, v53\nv_max3_f32 v56, v52, v54, v55\nv_mul_f32 v52, 0xbfb8aa3b, v56")
for e in range(4): A("v_fma_f32 v%d, v%d, s80, v52" % (48 + e, 48 + e))
for e in range(4): A("v_exp_f32 v%d, v%d" % (48 + e, 48 + e))
A("v_add_f32 v52, v48, v49\nv_cvt_pk_bf16_f32 v54, v48, v49\nv_add_f32 v53, v50, v51\nv_cvt_pk_bf16_f32 v55, v50, v51\nv_add_f32 v52, v52, v53\nds_write_b64 v10, v[54:55]")
for c in ROW: A("v_add_f32_dpp v52, v52, v52 %s %s" % (c, DPP))
A("ds_write_b32 v9, v52 offset:64")
wo_dma(1)
stamp("p_done")
def wreads(r, off):
    for mt in range(4):
        for h in range(2): A("ds_read_b64_tr_b16 %s, v%d offset:%d" % (vr(r + 4 * mt + 2 * h, 2), 148 + mt, off + h * 2048))
def wstage(a, b, addr):
    for mt in range(4): mfma(32 + 4 * mt, a + 4 * mt, b, "0")
    for mt in (0, 2): A("ds_write2_b32 %s, v%d, v%d offset0:%d offset1:%d" % (addr, 32 + 4 * mt, 36 + 4 * mt, 16 * mt, 16 * mt + 16))
A(f"s_cmp_eq_u32 {sROLE}, 2\ns_cbranch_scc0 L_noffn")
wreads(80, LF - LWO)
A("s_waitcnt vmcnt(%d)" % (8 if P["WOP"] == 2 else 12))
A("s_branch L_hchk\nL_hagain:")
hgather()
A("s_waitcnt vmcnt(0)\nL_hchk:")
untag(132, 8, 140)
retry("L_hagain", "L_hok")
rscatter8(132)
A("v_max_f32 v132, 0, v132\nv_max_f32 v133, 0, v133\nv_cvt_pk_bf16_f32 v132, v132, v133")
quad_b(136, 132)
A("s_waitcnt lgkmcnt(0)")
wstage(80, 136, "v161")
A("L_noffn:")
stamp("ffn")
wo_dma(2)
A("s_waitcnt vmcnt(8) lgkmcnt(0)\ns_barrier")
stamp("v012")
A("ds_read_b128 v[60:63], v8 offset:64")
def vreads(t, r):
    A("ds_read_b128 %s, v11 offset:%d" % (vr(64 + 4 * t, 4), 64 * t))
    vreads2(t, r)
def vreads2(t, r):
    for mt in range(2):
        for h in range(2): A("ds_read_b64_tr_b16 %s, v%d offset:%d" % (vr(r + 4 * mt + 2 * h, 2), 27 + mt, t * 8192 + h * 4096))
R3 = (96, 104, 112)
vreads(0, 96); vreads(1, 104)
A(f"v_mov_b32 v58, {sE}\nv_mov_b32 v59, {sE}\ns_lshl_b32 s80, {sW}, 4\ns_waitcnt lgkmcnt(10)")
A("v_add_f32 v60, v60, v61\nv_add_f32 v62, v62, v63")
vreads(2, 112)
A("v_add_f32 v57, v60, v62\ns_lshl_b64 exec, 1, s80")
gstore(f"buffer_store_dwordx4 v[56:59], v160, {WS}, s36 offen", "L_ss")
A("s_mov_b64 exec, -1")
for t in range(6):
    A("s_waitcnt lgkmcnt(%d)" % (10 if t < 4 else (7, 2)[t - 4]))
    for mt in range(2): mfma(40 + 4 * mt, R3[t % 3] + 4 * mt, 64 + 4 * t, "0" if t == 0 else None)
    if t + 3 < 6: vreads(t + 3, R3[t % 3])
    if t == 3: A("ds_read_b128 v[88:91], v11 offset:384\nds_read_b128 v[92:95], v11 offset:448")
def sgather(): A(f"buffer_load_dwordx4 v[184:187], v159, {WS}, s38 offen {PLD}")
def reduce_pub(d, addr, off, soff):
    for i in range(4): A("ds_read_b128 %s, %s offset:%d" % (vr(d + 4 * i, 4), addr, off + 1024 * i))
    A("s_waitcnt lgkmcnt(2)")
    for e in range(4): A("v_add_f32 v%d, v%d, v%d" % (d + e, d + e, d + 4 + e))
    A("s_waitcnt lgkmcnt(0)")
    for e in range(4): A("v_add_f32 v%d, v%d, v%d" % (d + 8 + e, d + 8 + e, d + 12 + e))
    for e in range(4): A("v_add_f32 v%d, v%d, v%d" % (d + e, d + e, d + 8 + e))
    tag(d)
    A(f"buffer_store_dwordx4 {vr(d, 4)}, v166, {WS}, {soff} offen {PST}")
sgather()
if P["GE"]:
    A(f"s_lshl_b32 s80, {sW}, 2\ns_add_u32 s80, s80, {sROLE}\ns_cmp_eq_u32 s80, 6\ns_cbranch_scc0 L_nog")
    reduce_pub(168, "v165", 4096, "s40")
    A("s_waitcnt vmcnt(7)\ns_branch L_gdone\nL_nog:")
stamp("pv1")
A("s_waitcnt vmcnt(6)\nL_gdone:\ns_barrier")
stamp("v3")
vreads2(6, 96); vreads2(7, 104)
for t in (6, 7):
    A("s_waitcnt lgkmcnt(%d)" % (4 * (7 - t)))
    for mt in range(2): mfma(40 + 4 * mt, R3[t - 6] + 4 * mt, 64 + 4 * t)
A(f"v_bfi_b32 v48, {vFF}, v142, v40\nv_bfi_b32 v49, {vFF}, v143, v44")
gstore(f"buffer_store_dwordx2 v[48:49], v158, {WS}, s37 offen", "L_os")
stamp("o_pub")
def ogather():
    for sh in range(2):
        for i in range(2): A(f"buffer_load_dwordx4 {vr(64 + 8 * sh + 4 * i, 4)}, v12, {WS}, s88 offen offset:{512 * sh + 64 * i} {PLD}")
ogather()
A("s_waitcnt vmcnt(5)")
wreads(96, 0)
A("s_branch L_schk\nL_sagain:")
sgather()
A(f"s_waitcnt vmcnt(0)\nL_schk:\nv_bitop3_b32 v186, v186, v187, {sE} bitop3:0x7e\nv_cmp_ne_u32 vcc, 0, v186")
retry("L_sagain", "L_sok")
A(f"v_max_f32_dpp v60, v184, v184 quad_perm:[1,0,3,2] {DPP}")
allred_g("v_max_f32", 60, 61)
A("v_sub_f32 v60, v184, v60\nv_mul_f32 v60, 0x3fb8aa3b, v60\nv_exp_f32 v60, v60\nv_mul_f32 v61, v60, v185")
A(f"v_add_f32_dpp v61, v61, v61 quad_perm:[1,0,3,2] {DPP}")
allred_g("v_add_f32", 61, 62)
A("v_rcp_f32 v61, v61\nv_mul_f32 v60, v60, v61")
A(f"v_mov_b32_dpp v62, v60 quad_perm:[0,0,0,0] {DPP}\nv_mov_b32_dpp v63, v60 quad_perm:[1,1,1,1] {DPP}")
stamp("st_ok")
A("s_branch L_ow\nL_oagain:")
ogather()
A("L_ow:\ns_waitcnt vmcnt(0)")
untag(64, 16, 61)
retry("L_oagain", "L_ook")
stamp("o_ok")
for e in range(8): A("v_mul_f32 v%d, v%d, v62" % (64 + e, 64 + e))
for e in range(8): A("v_fmac_f32 v%d, v%d, v63" % (64 + e, 72 + e))
rscatter8(64, True)
A("v_cvt_pk_bf16_f32 v64, v64, v65")
quad_b(68, 64)
A("s_waitcnt lgkmcnt(0)")
wstage(96, 68, "v147")
def ticket():
    A(f"v_mov_b32 v60, 1\ns_mov_b64 exec, 1\nbuffer_atomic_add v60, v160, {WS}, s45 offen sc0 sc1\ns_mov_b64 exec, -1")
if not P["GE"]: A(f"v_add_u32 v165, {sW4K}, v165\ns_cmp_eq_u32 {sW}, 0\ns_cselect_b32 s39, s39, s40")
if P["TK"] == 2:
    A(f"s_cmp_ge_u32 {sW}, 2\ns_cbranch_scc0 L_tk2"); ticket(); A("L_tk2:")
A(f"s_cmp_ge_u32 {sW}, 2\ns_waitcnt lgkmcnt(0)\ns_barrier\ns_cbranch_scc1 L_final")
if P["GE"]: A(f"s_cmp_eq_u32 {sW}, 0\ns_cbranch_scc0 L_done")
else: A(f"s_lshl_b32 s80, {sW}, 1\ns_andn2_b32 s80, s80, {sROLE}\ns_cbranch_scc1 L_done")
reduce_pub(32, "v165", 0, "s39")
stamp("s_pub")
A("s_branch L_done")
A("L_final:")
if P["TK"]:
    if P["TK"] == 2: A("s_branch L_tkw")
    A("L_tkagain:"); ticket()
    A(f"""L_tkw:
s_waitcnt vmcnt(0)
v_readfirstlane_b32 s41, v60
s_xor_b32 s41, s41, s44
s_cmp_lt_u32 s41, 32
s_cbranch_scc1 L_tkok
s_add_u32 {sSPIN}, {sSPIN}, 1
s_cmp_lt_u32 {sSPIN}, {P["SPIN"]}
s_cbranch_scc1 L_tkagain
s_branch L_done
L_tkok:
s_sub_u32 s41, s41, 28
s_cbranch_scc1 L_done
s_lshl_b32 s41, s41, 4
s_bfe_u32 s80, s45, 0x40007
s_add_u32 s41, s41, s80
s_mul_i32 s42, s41, 6144
s_add_u32 s42, s42, {SP}
s_add_u32 s43, s42, 4096
s_lshl_b32 s83, s41, 6""")
    stamp("tk")
else: A(f"s_cmp_eq_u32 {sW}, 2\ns_cbranch_scc0 L_done\ns_cmp_lt_u32 s41, 64\ns_cbranch_scc0 L_done")
A(f"buffer_load_ushort v60, v167, {X}, s83 offen")
A("L_fagain:")
for i in range(4): A(f"buffer_load_dwordx4 {vr(32 + 4 * i, 4)}, v164, {WS}, s42 offen offset:{1024 * i} {PLD}")
A(f"buffer_load_dwordx4 v[48:51], v164, {WS}, s43 offen {PLD}")
for e in range(4): A("v_mov_b32 v%d, %s" % (52 + e, sT[e]))
A(f"s_mov_b32 s80, exec_hi\ns_and_b32 exec_hi, exec_hi, 0xffff\ns_cbranch_execz L_fskip\nbuffer_load_dwordx4 v[52:55], v164, {WS}, s43 offen offset:1024 {PLD}\nL_fskip:\ns_mov_b32 exec_hi, s80")
A("s_waitcnt vmcnt(0)")
untag(32, 24, 61)
retry("L_fagain", "L_fok")
stamp("f_ok")
for e in range(4): A("v_add_f32 v%d, v%d, v%d" % (48 + e, 48 + e, 52 + e))
for e in range(8): A("v_add_f32 v%d, v%d, v%d" % (32 + e, 32 + e, 40 + e))
for e in range(4): A("v_add_f32 v%d, v%d, v%d" % (32 + e, 32 + e, 36 + e))
for r in (48, 32):
    for e in range(2): A("v_permlane32_swap_b32 v%d, v%d" % (r + e, r + 2 + e))
for r in (48, 32):
    for e in range(2): A("v_add_f32 v%d, v%d, v%d" % (r + e, r + e, r + 2 + e))
for r in (48, 32): A("v_permlane16_swap_b32 v%d, v%d" % (r, r + 1))
for r in (48, 32): A("v_add_f32 v%d, v%d, v%d" % (r, r, r + 1))
A("v_lshlrev_b32 v60, 16, v60")
for r in (48, 32): A("v_add_f32_dpp v%d, v%d, v%d row_ror:8 %s" % (r, r, r, DPP))
rbf2(48, 32, 48, 32, 33)
A("v_mul_f32 v49, 0xbfb8aa3b, v48\nv_exp_f32 v49, v49\nv_add_f32 v49, 1.0, v49\nv_rcp_f32 v49, v49\nv_mul_f32 v48, v48, v49")
rbf(48)
A("v_mul_f32 v32, v32, v48"); rbf(32)
A("v_add_f32 v32, v60, v32\nv_cvt_pk_bf16_f32 v32, v32, v32")
A(f"s_mov_b32 exec_lo, 0x00ff00ff\ns_mov_b32 exec_hi, 0x00ff00ff\nbuffer_store_short v32, v167, {OUT}, s83 offen")
A(f"s_cmp_eq_u32 s41, 0\ns_cbranch_scc0 L_done\nv_mov_b32 v33, {sE}\ns_mov_b64 exec, 1\nbuffer_store_dword v33, v160, {WS}, 0 offen")
A("L_done:")
if P["DIAG"]:
    stamp("end")
    A("s_sub_u32 s94, s94, s96\ns_lshl_b32 s94, s94, 2\ns_add_u32 s94, s94, 4000\nL_diag:\ns_memrealtime s[98:99]\ns_waitcnt lgkmcnt(0)\ns_sub_u32 s98, s98, s96\ns_cmp_lt_u32 s98, s94\ns_cbranch_scc1 L_diag")
if STAMP:
    A("s_mov_b64 exec, -1")
    stamp("end")
    A(f"v_writelane_b32 v127, {sSPIN}, 61\nv_writelane_b32 v127, {sFAST}, 60")
    A(f"s_lshl_b32 s80, s2, 10\ns_add_u32 s80, s80, {STP}\nv_lshlrev_b32 v7, 2, v0\nbuffer_store_dword v127, v7, {WS}, s80 offen")
A("L_end:\ns_endpgm")
hdr = open("recurrent_scan__sliding_block_cached__dense_activation_relu__decode.s.ref").read().split("; Override launch")[0]
print(hdr + "; @launch grid=(256,1,1) block=(256,1,1) lds=%d" % LDS_BYTES)
print('.amdgcn_target "amdgcn-amd-amdhsa--gfx950"\n.text\n.globl %s\n.p2align 8\n.type %s,@function\n%s:' % (KN, KN, KN))
print(A.text())
print('.section .rodata,"a"\n.p2align 6\n.amdhsa_kernel %s\n  .amdhsa_next_free_vgpr 192\n  .amdhsa_next_free_sgpr 102\n  .amdhsa_accum_offset 192\n  .amdhsa_group_segment_fixed_size 0\n  .amdhsa_kernarg_size 88\n  .amdhsa_user_sgpr_count 2\n  .amdhsa_user_sgpr_kernarg_segment_ptr 1\n  .amdhsa_system_sgpr_workgroup_id_x 1\n.end_amdhsa_kernel' % KN)
```

```python
import sys
from asmlib import Asm
KN = "recurrent_scan__sliding_block_cached__dense_activation_relu__decode_kernel"
P = dict(STS="", WOP=1, ROT=20992, FAST=1, X1=2, XO=6, XL=1, SG2=1, FIN=1, TLB=0, FLP=2, V3E=0, LATE=1, PRE=0, TK=1, GE=1, QG2=1, KS="4+4+8", NK0=2, NV0=0, PKV="nt", PW="nt", STAMP=0, SPIN=200000, WARM=2, QX=0, PSTG="sc1", FINE=0, SLEEP=0, PST="sc1", PLD="sc1", K2E=1, DIAG="")
for a in sys.argv[1:]:
    k, v = a.split("=")
    P[k] = type(P[k])(v) if v != "def" else ""
PSTG = P["PSTG"]
PST, PLD = P["PST"].replace("_", " "), P["PLD"].replace("_", " ")
NK0, NV0, PKV, PW, STAMP = P["NK0"], P["NV0"], P["PKV"], P["PW"], P["STAMP"]
LV, LK, LF, LS = 0, 65536, 131072, 147456
LWQ, LWO = LV, LK + 49152
LXN = LS; LQ = LXN + 4352; LMX = LQ + 1280; LL = LMX + 64; LP = LL + 64; LRS = LP + 2304 + 128; LRG = LRS + 4096
LDS_BYTES = LRG + 4096
assert LRS % 256 == 0 and LDS_BYTES <= 163840
QP, HP, ST, OP, SP, WSZ = 0x1000, 0x41000, 0x79000, 0x80000, 0x100000, 0x160000
STP = 0x200000
TKB = 0x800
DPP = "row_mask:0xf bank_mask:0xf"
A = Asm()
nst = [0]
def stamp(name):
    if P["DIAG"] == name: A("s_memrealtime s[94:95]\ns_waitcnt lgkmcnt(0)")
    if not STAMP or (P["STS"] and name not in P["STS"].split("+")): return
    i = nst[0]; nst[0] += 1
    A("s_memrealtime s[98:99]\ns_waitcnt lgkmcnt(0)\nv_writelane_b32 v127, s98, %d ; stamp %s" % (i, name))
    print("stamp", i, name, file=sys.stderr)
X, WQ, K, V, WO, WF, WS, OUT = ("s[%d:%d]" % (i, i + 3) for i in range(4, 36, 4))
sW, sHKV, sLO, sHI, sROLE, sE = "s52", "s53", "s55", "s56", "s57", "s60"
sT = ["s61", "s62", "s63", "s64"]
sKV, sW4K = "s58", "s59"
sM0, sM1, sM2, sM3, sM01 = "s[66:67]", "s[68:69]", "s[70:71]", "s[72:73]", "s[74:75]"
sF0, sF1 = "s76", "s77"
sSPIN = "s78"
sKS, sCO, sC2 = "s66", "s67", "s68"
vL, vN, vG, vU, vHB, vFF = "v1", "v2", "v3", "v4", "v5", "v6"
def vr(a, n): return "v[%d:%d]" % (a, a + n - 1)

def tile_dma(srd, voff, sbase, pitch, lds, rows=(0, 8, 16, 24)):
    A("s_add_u32 m0, %s, %d" % (sW4K, lds))
    for i in range(4):
        if i: A("s_add_i32 %s, %s, %d" % (sbase, sbase, (rows[i] - rows[i - 1]) * pitch - 1024))
        A("buffer_load_dwordx4 %s, %s, %s offen offset:%d %s lds" % (voff, srd, sbase, 1024 * i, PW))
def kv_dma(srd, voffs, lds, a, i0=0, i1=4):
    if i0 == i1: return
    if srd == K:
        if i0 == 0:
            d = a ^ (a - 1)
            for v in voffs: A("v_xor_b32 %s, %d, %s" % (v, d << 14 | d << 6, v))
        A("s_add_u32 m0, %s, %d" % (sW4K, lds + a * 16384))
        for i in range(i0, i1): A("global_load_lds_dwordx4 %s, s[38:39] offset:%d %s" % (voffs[i], 1024 * i, PKV))
        return
    A("s_add_u32 m0, %s, %d\ns_xor_b32 s79, %s, %d" % (sW4K, lds + a * 16384, sKV, a * 16384))
    for i in range(i0, i1):
        A("buffer_load_dwordx4 %s, %s, s79 offen offset:%d %s lds" % (voffs[i % len(voffs)], srd, 1024 * i, PKV))
def tag(r):
    for e in range(4): A("v_bfi_b32 v%d, %s, %s, v%d" % (r + e, vFF, sT[e], r + e))
def untag(r, n, t):
    for e in range(n): A("v_xor_b32 v%d, %s, v%d" % (r + e, sT[e % 4], r + e))
    A("v_or3_b32 v%d, v%d, v%d, v%d" % (t, r, r + 1, r + 2))
    i = 3
    while i + 1 < n:
        A("v_or3_b32 v%d, v%d, v%d, v%d" % (t, t, r + i, r + i + 1)); i += 2
    A("v_bitop3_b32 v%d, v%d, v%d, %s bitop3:0xa8" % (t, t, r + i, vFF))
    A("v_cmp_ne_u32 vcc, 0, v%d" % t)
def retry(lbl_again, lbl_ok):
    A("s_cbranch_vccz %s\ns_mov_b64 exec, vcc\n" % lbl_ok + ("s_sleep %d\n" % P["SLEEP"] if P["SLEEP"] else "") + "s_add_u32 %s, %s, 1\ns_cmp_lt_u32 %s, %d\ns_cbranch_scc1 %s\n%s:" % (sSPIN, sSPIN, sSPIN, P["SPIN"], lbl_again, lbl_ok))
    A("s_mov_b64 exec, -1")
def rscatter8(r, alt=False):
    for e in range(4): A("v_permlane32_swap_b32 v%d, v%d" % (r + e, r + 4 + e))
    for e in range(0, 4, 2): A("v_pk_add_f32 %s, %s, %s" % (vr(r + e, 2), vr(r + e, 2), vr(r + 4 + e, 2)))
    pr = ((0, 1), (2, 3)) if alt else ((0, 2), (1, 3))
    for a, b in pr: A("v_permlane16_swap_b32 v%d, v%d" % (r + a, r + b))
    for e, (a, b) in enumerate(pr): A("v_add_f32 v%d, v%d, v%d" % (r + e, r + a, r + b))
def allred_g(op, r, t):
    A("v_mov_b32 v%d, v%d\nv_permlane16_swap_b32 v%d, v%d\n%s v%d, v%d, v%d" % (t, r, r, t, op, r, r, t))
    A("v_mov_b32 v%d, v%d\nv_permlane32_swap_b32 v%d, v%d\n%s v%d, v%d, v%d" % (t, r, r, t, op, r, r, t))
def allred64(r, t):
    for c in ("quad_perm:[1,0,3,2]", "quad_perm:[2,3,0,1]", "row_half_mirror", "row_mirror"):
        A("v_add_f32_dpp v%d, v%d, v%d %s %s" % (r, r, r, c, DPP))
    allred_g("v_add_f32", r, t)
def rbf(r):
    A("v_cvt_pk_bf16_f32 v%d, v%d, v%d\nv_and_b32 v%d, 0xffff0000, v%d" % (r, r, r, r, r))
def rbf2(d0, d1, a, b, t):
    A("v_cvt_pk_bf16_f32 v%d, v%d, v%d\nv_lshlrev_b32 v%d, 16, v%d\nv_and_b32 v%d, 0xffff0000, v%d" % (t, a, b, d0, t, d1, t))
def quad_b(dst, src):
    for i, r in enumerate((0, 1, 2, 3)):
        A("v_mov_b32_dpp v%d, v%d quad_perm:[%d,%d,%d,%d] %s" % (dst + i, src, r, r, r, r, DPP))
def mfma(d, a, b, c=None):
    A("v_mfma_f32_16x16x32_bf16 %s, %s, %s, %s" % (vr(d, 4), vr(b, 4), vr(a, 4), vr(d, 4) if c is None else c))

sFAST = "s69"
def gstore(ins, lbl):
    if P["FAST"] == 0: A(ins + " sc1"); return
    if P["FAST"] == 2: A(ins); return
    A(f"s_cmp_eq_u32 {sFAST}, 0\ns_cbranch_scc1 {lbl}_f\n{ins} sc1\ns_branch {lbl}_e\n{lbl}_f:\n{ins}\n{lbl}_e:")
def role_wait(n, extra, lbl, role, tail=""):
    A(f"s_cmp_{role}\ns_cbranch_scc1 {lbl}\ns_waitcnt vmcnt({n})\n{lbl}:\ns_waitcnt vmcnt({n + extra}) {tail}")
if STAMP or P["DIAG"]: A("s_memrealtime s[96:97]")
A(f"""
s_load_dwordx16 s[36:51], s[0:1], 0
s_load_dwordx4 s[72:75], s[0:1], 72
s_getpc_b64 s[80:81]
v_mad_u64_u32 v[162:163], vcc, v0, 32, s[80:81]
s_cmpk_ge_u32 s2, 256
s_cbranch_scc1 L_end
global_load_dword v162, v[162:163], off
v_readfirstlane_b32 {sW}, v0
v_lshrrev_b32 v9, 3, v0
v_lshlrev_b32 v8, 4, v0                 ; x offset
v_bitop3_b32 v10, v9, v0, 7 bitop3:0x28
s_and_b32 {sHKV}, s2, 7
s_lshr_b32 {sHI}, s2, 5
s_lshl3_add_u32 s81, {sHKV}, {sHI}
s_and_b32 s80, s2, 24
s_lshl_b32 s80, s80, 10
s_add_u32 s81, s81, s80
s_lshl_b32 s81, s81, 7
v_lshl_add_u32 v11, v9, 9, v10
s_bfm_b32 s82, 8, 10
v_lshl_add_u32 v11, v11, 4, s81
s_lshl_b32 m0, {sW}, 6
v_add_u32 v12, s82, v11
v_add_u32 v13, s82, v12
v_add_u32 v18, s82, v13
s_and_b32 {sKV}, s2, 31
s_lshl_b32 {sKV}, {sKV}, 5
s_add_u32 {sKV}, {sKV}, {sHI}
s_addk_i32 {sKV}, 24
s_lshl_b32 {sKV}, {sKV}, 16
s_lshl1_add_u32 {sKV}, s80, {sKV}
s_movk_i32 s82, 3072
v_add_u32 v14, {sKV}, v8
v_xad_u32 v15, v14, 16, s82
v_xad_u32 v16, v15, 48, s82
s_waitcnt lgkmcnt(0)
global_load_dwordx4 v[20:23], v8, s[36:37]
s_load_dword {sE}, s[74:75], 0
global_load_lds_dwordx4 v11, s[42:43] {PW}
global_load_lds_dwordx4 v12, s[42:43] offset:1024 {PW}
global_load_lds_dwordx4 v13, s[42:43] offset:2048 {PW}
global_load_lds_dwordx4 v18, s[42:43] offset:3072 {PW}
s_bitset1_b32 m0, 16
v_xad_u32 v17, v16, 16, s82
global_load_lds_dwordx4 v14, s[38:39] {PKV}
global_load_lds_dwordx4 v15, s[38:39] offset:1024 {PKV}
global_load_lds_dwordx4 v16, s[38:39] offset:2048 {PKV}
global_load_lds_dwordx4 v17, s[38:39] offset:3072 {PKV}
L_head_end:
s_load_dwordx2 s[32:33], s[0:1], 64
s_lshl_b32 {sW4K}, {sW}, 6
s_lshr_b32 {sW}, {sW}, 6
s_bfe_u32 {sLO}, s2, 0x20003
s_getreg_b32 s70, hwreg(HW_REG_XCC_ID, 0, 4)
s_lshl_b32 s92, {sHKV}, 5
s_or_b32 s70, s70, 0x80
s_lshr_b32 s93, s2, 3
s_add_u32 s93, s93, s92
v_mov_b32 v19, s70
v_mov_b32 v18, s93
s_cmp_eq_u32 {sW}, 3
s_cbranch_scc0 L_nox""")
if P["FAST"] == 1: A("s_mov_b64 exec, 1\nglobal_store_byte v18, v19, s[72:73]\ns_mov_b64 exec, -1")
A(f"""L_nox:
v_lshlrev_b32 v10, 4, v10
s_mov_b32 s26, 1835008
s_mov_b32 s27, 0x20000
s_mov_b32 {sROLE}, 0
s_lshl2_add_u32 {sF0}, {sHKV}, {sHI}
s_xor_b32 {sF0}, {sF0}, {P['X1']}
s_xor_b32 {sCO}, {sHI}, {P['XO']}
s_bfe_u32 {sC2}, s2, 0x30003
s_bfe_u32 {sF1}, s2, 0x10006
s_lshl1_add_u32 {sF1}, {sHKV}, {sF1}
s_lshl2_add_u32 s90, {sF1}, {sW}        ; 4*rb+w
s_cmp_eq_u32 {sHKV}, 7
s_cbranch_scc1 L_now2
s_cmp_lt_u32 s2, 128
s_cbranch_scc0 L_now1
s_mov_b32 {sROLE}, 1
s_mov_b64 s[24:25], s[48:49]
v_mul_u32_u24 v12, 3584, v9
s_mul_i32 s83, {sLO}, 3584
s_add_u32 s83, s83, {sF0}
s_lshl_b32 s83, s83, 7                  ; w1 base
v_add_u32 v12, v12, v10                 ; w1 voffset
""")
tile_dma(WF, "v12", "s83", 3584, LF, (0, 32, 64, 96))
A(f"""s_branch L_now2
L_now1:
s_mov_b32 {sROLE}, 2
s_mov_b64 s[24:25], s[50:51]
v_bfe_u32 v7, v9, 2, 1
v_and_b32 v13, 2, v9
v_add_u32 v13, v13, v7
v_and_b32 v18, 1, v9
v_lshl_add_u32 v13, v13, 1, v18
s_lshl_b32 s91, s90, 8
s_add_u32 s91, s91, {sC2}
s_lshl_b32 s91, s91, 7                  ; w2 base
v_lshl_add_u32 v13, v13, 10, v10
""")
tile_dma(WF, "v13", "s91", 1024, LF, (0, 16, 8, 24))
A(f"""L_now2:
""")
NS = 0
A(f"""
v_and_b32 {vL}, 63, v0
s_add_u32 {sKV}, {sKV}, {sW4K}
v_lshrrev_b32 {vG}, 4, {vL}
s_mov_b64 s[4:5], s[36:37]
s_mov_b32 s6, 4096
s_mov_b32 s7, 0x20000
""")
KO = ["v14", "v15", "v16", "v17"]; VO = ["v144", "v145"]
KS = [int(x) for x in P["KS"].split("+")] + [16]
HEAD = KS[0]
def k_issue(p0, p1):
    while p0 < p1:
        a = p0 // 4; e = min(p1, 4 * a + 4)
        kv_dma(K, KO, LK, a, p0 - 4 * a, e - 4 * a); p0 = e
k_issue(4, HEAD)
if STAMP: A("v_mov_b32 v127, 0\nv_writelane_b32 v127, s96, 63\nv_writelane_b32 v127, s70, 62\ns_getreg_b32 s98, hwreg(HW_REG_HW_ID)\nv_writelane_b32 v127, s98, 58")
if P["DIAG"]: A("s_mov_b32 s94, s96")
stamp("issued0")
if STAMP and "ka" in P["STS"]:
    for n, r in (("pre_ka", "s94"), ("ka", "s100")):
        A("v_writelane_b32 v127, %s, %d ; stamp %s" % (r, nst[0], n)); nst[0] += 1
A(f"""
s_mov_b64 s[16:17], s[40:41]
s_mov_b32 s18, 0x4000000
s_mov_b32 s19, 0x20000
s_mov_b64 s[20:21], s[44:45]
s_mov_b32 s22, 0x400000
s_mov_b32 s23, 0x20000
s_mov_b64 s[28:29], s[74:75]
s_mov_b32 s30, {0x400000 if STAMP else WSZ}
s_mov_b32 s31, 0x20000
s_mov_b32 s34, 4096
s_mov_b32 s35, 0x20000
s_mov_b32 {sSPIN}, 0
v_and_b32 {vN}, 15, {vL}
v_and_b32 {vU}, 3, {vL}
v_bfe_u32 {vHB}, {vL}, 2, 2
v_mov_b32 {vFF}, 0xff
s_mul_i32 s80, {sW}, 1088
s_add_u32 s80, s80, {LXN}
v_lshl_add_u32 v24, {vL}, 4, s80
s_lshl_b32 s80, {sLO}, 8
s_add_u32 s80, s80, {LXN}
v_mul_u32_u24 v25, 1088, {vHB}
v_and_b32 v7, 1, {vG}
v_lshl_add_u32 v25, v7, 3, v25
v_and_b32 v7, 2, {vG}
v_lshl_add_u32 v25, v7, 5, v25
v_add_u32 v25, s80, v25
v_bfe_u32 v7, v9, 2, 1
v_and_b32 v13, 3, v9
v_lshl_add_u32 v13, v7, 4, v13
v_lshl_add_u32 v13, v13, 10, v10
v_lshl_add_u32 v7, {vG}, 2, {vHB}
v_and_b32 v9, 7, v7
v_lshlrev_b32 v9, 1, v9
v_xor_b32 v9, v9, {vU}
v_lshlrev_b32 v9, 3, v9
v_lshl_add_u32 v9, v7, 7, v9
s_lshl_b32 s80, {sW}, 5
v_xor_b32 v26, s80, v9
v_add_u32 v146, {LF}, v26               ; w1
s_add_u32 s80, {sW4K}, {LWO}
v_add_u32 v148, s80, v9
v_xor_b32 v149, 32, v148
v_xor_b32 v150, 64, v148
v_xor_b32 v151, 0x60, v148
v_lshlrev_b32 v7, 2, {vN}
v_lshl_add_u32 v29, {vG}, 13, v7
v_lshl_add_u32 v30, {vG}, 10, v7
v_lshl_add_u32 v7, {vG}, 8, v7
s_lshl_b32 s80, {sW}, 10
s_add_u32 s80, s80, {LRS}
v_add_u32 v147, s80, v7
v_add_u32 v161, 4096, v147
s_lshl_b32 s84, {sHKV}, 4
s_add_u32 s84, s84, {sLO}
s_lshl_b32 s84, s84, 3
s_add_u32 s84, s84, {sHI}
s_lshl_b32 s84, s84, 2
s_add_u32 s84, s84, {sW}
s_lshl_b32 s84, s84, 6
s_add_u32 s84, s84, {QP}
s_lshl_b32 s85, {sF0}, 1
s_lshr_b32 s80, {sW}, 1
s_add_u32 s85, s85, s80
s_lshl_b32 s85, s85, 5
s_add_u32 s85, s85, {sLO}
s_lshl_b32 s85, s85, 1
s_and_b32 s81, {sW}, 1
s_add_u32 s85, s85, s81
s_lshl_b32 s85, s85, 6
s_add_u32 s85, s85, {HP}
s_mul_i32 s70, s70, 0x01010101
""")
def late_setup():
    A(f"""
v_lshl_add_u32 v7, {vG}, 2, {vHB}
v_and_b32 v9, 7, v7
s_lshl_b32 s80, {sW}, 1
v_xor_b32 v9, s80, v9
v_lshlrev_b32 v9, 5, v9
v_lshl_add_u32 v9, v7, 8, v9
v_lshl_add_u32 v27, {vU}, 3, v9
v_xor_b32 v28, 32, v27
v_lshlrev_b32 v7, 1, {vG}
v_xor_b32 v144, {vN}, v7
v_lshlrev_b32 v144, 4, v144
v_lshl_add_u32 v144, {vG}, 8, v144
v_xor_b32 v145, 0x80, v144
s_lshl4_add_u32 s80, {sW}, {LP}
v_mul_u32_u24 v10, 576, {vG}
v_and_b32 v7, 14, {vN}
v_lshl_add_u32 v10, v7, 5, v10
v_and_b32 v7, 1, {vN}
v_lshl_add_u32 v10, v7, 3, v10
v_add_u32 v10, s80, v10
v_mul_u32_u24 v11, 576, {vHB}
v_lshl_add_u32 v11, {vG}, 4, v11
v_add_u32 v11, {LP}, v11
v_lshlrev_b32 v31, 4, {vN}
v_lshl_add_u32 v31, {vG}, 11, v31
s_lshl_b32 s86, {sHKV}, 2
s_add_u32 s86, s86, {sLO}               ; 4*hkv+lo
s_lshl_b32 s87, s86, 4
s_add_u32 s87, s87, {sW}
s_lshl_b32 s87, s87, 9
s_add_u32 s87, s87, {QP}
s_lshl_b32 s88, s86, 2
s_add_u32 s88, s88, {sW}                ; (4*hkv+h)*4+w
s_lshl_b32 s89, s88, 8
s_add_u32 s89, s89, {sCO}
s_lshl_b32 s89, s89, 7
s_lshl_b32 s88, s88, 12
s_add_u32 s88, s88, {OP}                ; O gather
s_lshl_b32 s90, s90, 12
s_add_u32 s90, s90, {HP}                ; h gather
v_xor_b32 v7, {vG}, {vN}
v_lshlrev_b32 v7, 4, v7
v_lshl_add_u32 v7, {vU}, 10, v7
v_lshl_add_u32 v7, {vHB}, 14, v7
s_add_u32 s80, {sW4K}, {LK}
v_add_u32 v152, s80, v7
v_xor_b32 v153, 64, v152
v_xor_b32 v154, 0x80, v152
v_xor_b32 v155, 0xc0, v152
v_lshrrev_b32 v7, 1, {vG}
v_and_b32 v9, 1, {vG}
v_lshlrev_b32 v7, 7, v7
v_lshl_add_u32 v7, {vN}, 3, v7
v_lshl_add_u32 v7, v9, 2, v7
s_mul_i32 s80, {sW}, 320
s_add_u32 s80, s80, {LQ}
v_add_u32 v156, s80, v7
v_mul_u32_u24 v157, 320, {vHB}
v_lshl_add_u32 v157, {vG}, 4, v157
v_add_u32 v157, {LQ}, v157
v_lshlrev_b32 v8, 4, {vG}
v_add_u32 v8, {LMX}, v8
s_lshl_b32 s80, {sW}, 2
v_add_u32 v9, s80, v8
v_lshlrev_b32 v12, 4, {vU}
v_lshl_add_u32 v12, {vG}, 7, v12
v_lshl_add_u32 v12, {vHB}, 10, v12
v_lshlrev_b32 v158, 3, {vN}
v_lshl_add_u32 v158, {vG}, 14, v158
v_and_b32 v7, 1, {vU}
v_lshl_add_u32 v159, v7, 2, {vG}
v_lshl_add_u32 v159, {vHB}, 3, v159
v_lshlrev_b32 v159, 4, v159
v_mov_b32 v160, 0
s_lshl_b32 s80, {sLO}, 3
s_add_u32 s80, s80, {sHI}               ; 8*b+s
s_lshl_b32 s81, {sHKV}, 2
s_add_u32 s81, s81, {sW}
s_lshl_b32 s81, s81, 5
s_add_u32 s81, s81, s80
s_lshl_b32 s81, s81, 4
s_add_u32 s36, s81, {ST}
s_lshl_b32 s37, {sHKV}, 16
s_add_u32 s37, s37, {sW4K}
s_lshl_b32 s80, s80, 7
s_add_u32 s37, s37, s80
s_add_u32 s37, s37, {OP}                ; O publish
s_lshl_b32 s46, s86, 9
s_add_u32 s46, s46, {ST}
v_lshlrev_b32 v164, 4, {vL}
v_add_u32 v165, {LRS}, v164
v_and_b32 v18, 7, {vN}
v_bfe_u32 v19, {vL}, 3, 1
v_lshl_add_u32 v19, {vG}, 4, v19
v_mul_u32_u24 v19, 6144, v19
v_lshl_add_u32 v166, v18, 4, v19
v_lshl_add_u32 v18, v18, 2, {vG}
v_lshlrev_b32 v167, 1, v18
s_mul_i32 s47, {sCO}, 12288
s_lshl_b32 s80, s86, 7
s_add_u32 s47, s47, s80
s_add_u32 s47, s47, {SP}                ; s publish
s_mul_i32 s40, {sC2}, 12288
s_lshl_b32 s80, {sF1}, 7
s_add_u32 s40, s40, s80
s_add_u32 s40, s40, {SP + 4096}         ; g publish
s_sub_u32 s41, s2, 192
s_mul_i32 s42, s41, 6144
s_add_u32 s42, s42, {SP}
s_add_u32 s43, s42, 4096
s_lshl_b32 s83, s41, 6
v_lshlrev_b32 v7, 4, v7
v_lshrrev_b32 v142, v7, {sE}            ; O tags
v_lshrrev_b32 v143, 8, v142
""")
if not P["LATE"]: late_setup()
def fast_load():
    if P["FAST"] == 1: A("s_load_dwordx8 s[44:51], s[72:73], s92")
def fast_eval():
    if P["FAST"] != 1: return
    for i in range(44, 52, 2): A("s_xor_b64 s[%d:%d], s[%d:%d], s[70:71]" % (i, i + 1, i, i + 1))
    A(f"s_or_b64 s[44:45], s[44:45], s[46:47]\ns_or_b64 s[48:49], s[48:49], s[50:51]\ns_or_b64 s[44:45], s[44:45], s[48:49]\ns_cselect_b32 {sFAST}, 1, 0")
def early_wait(n, lbl):
    opts = sorted(set(a + b for a in (0, 4) for b in (0, 1)))
    for o in opts[:-1]: A(f"s_cmp_gt_u32 s93, {o}\ns_cbranch_scc1 {lbl}_{o}\ns_waitcnt vmcnt({n + o})\n{lbl}_{o}:")
    A(f"s_waitcnt vmcnt({n + opts[-1]})")
A(f"s_cmp_eq_u32 {sW}, 3\ns_cselect_b32 s93, {1 if P['FAST'] == 1 else 0}, 0")
A(f"s_min_u32 s80, {sROLE}, 1\ns_lshl2_add_u32 s93, s80, s93")
early_wait(4 + HEAD, "L_xw")
stamp("x")
for i in range(4): A("v_lshlrev_b32 v%d, 16, v%d\nv_and_b32 v%d, 0xffff0000, v%d" % (32 + 2 * i, 20 + i, 33 + 2 * i, 20 + i))
A("v_readfirstlane_b32 s80, v32")
for i in range(8): A("v_subrev_f32 v%d, s80, v%d" % (44 + i, 32 + i))
A("v_add_f32 v40, v44, v45\nv_mul_f32 v42, v44, v44\nv_add_f32 v41, v46, v47\nv_mul_f32 v43, v45, v45")
for i in range(2, 8):
    A("v_fmac_f32 v%d, v%d, v%d" % (42 + i % 2, 44 + i, 44 + i))
    if i >= 4: A("v_add_f32 v%d, v%d, v%d" % (40 + i % 2, 40 + i % 2, 44 + i))
A("v_add_f32 v40, v40, v41\nv_add_f32 v42, v42, v43")
for c in ("quad_perm:[1,0,3,2]", "quad_perm:[2,3,0,1]", "row_half_mirror", "row_mirror"):
    for r in (40, 42): A("v_add_f32_dpp v%d, v%d, v%d %s %s" % (r, r, r, c, DPP))
for sw in ("16", "32"):
    A("v_mov_b32 v41, v40\nv_mov_b32 v43, v42\nv_permlane%s_swap_b32 v40, v41\nv_permlane%s_swap_b32 v42, v43\nv_add_f32 v40, v40, v41\nv_add_f32 v42, v42, v43" % (sw, sw))
A("v_mul_f32 v40, 0x3b000000, v40\nv_mul_f32 v42, 0x3b000000, v42\nv_fma_f32 v42, -v40, v40, v42\nv_add_f32 v40, s80, v40\nv_max_f32 v42, 0, v42")
rbf2(40, 42, 40, 42, 41)
A("v_add_f32 v42, 0x3727c5ac, v42"); rbf(42)
A("v_sqrt_f32 v42, v42")
for i in range(8): A("v_sub_f32 v%d, v%d, v40" % (32 + i, 32 + i))
rbf(42)
A("v_rcp_f32 v42, v42")
for i in range(4): rbf2(32 + 2 * i, 33 + 2 * i, 32 + 2 * i, 33 + 2 * i, 44 + i)
for i in range(8): A("v_mul_f32 v%d, v%d, v42" % (32 + i, 32 + i))
for i in range(4): A("v_cvt_pk_bf16_f32 v%d, v%d, v%d" % (44 + i, 32 + 2 * i, 33 + 2 * i))
A("ds_write_b128 v24, v[44:47]")
stamp("ln")
k_issue(KS[0], KS[1])
A("s_waitcnt lgkmcnt(0)")
A(f"""s_add_u32 {sE}, {sE}, 0x9d5b3701
s_and_b32 {sT[0]}, {sE}, 0xff
s_bfe_u32 {sT[1]}, {sE}, 0x80008
s_bfe_u32 {sT[2]}, {sE}, 0x80010
s_lshr_b32 {sT[3]}, {sE}, 24
v_lshlrev_b32 v7, 3, {vU}
v_lshrrev_b32 v141, v7, {sE}
""")
early_wait(KS[1], "L_wqw")
A("s_barrier")
stamp("wq")
for t in range(4): A("ds_read2_b64 %s, v25 offset0:%d offset1:%d" % (vr(32 + 4 * t, 4), 2 * t, 2 * t + 16))
def proj(addr, lds, voff, soff, lbl):
    for t in range(4):
        for h in range(2): A("ds_read_b64_tr_b16 %s, %s offset:%d" % (vr(48 + 4 * t + 2 * h, 2), addr, lds + t * 4096 + h * 2048))
    for t in range(4):
        A("s_waitcnt lgkmcnt(%d)" % (6 - 2 * t)); mfma(64, 48 + 4 * t, 32 + 4 * t, "0" if t == 0 else None)
    A(f"v_bfi_b32 {lbl}, {vFF}, v141, v64\nbuffer_store_dword {lbl}, {voff}, {WS}, {soff} offen" + ("" if P["FAST"] else " sc1"))
proj("v26", LWQ, "v29", "s84", "v190")
stamp("qpub")

if P["TK"]:
    A(f"s_and_b32 s44, {sE}, 0xffffff00\ns_lshl_b32 s45, {sCO}, 1\ns_add_u32 s45, s45, {sW}\ns_lshl_b32 s45, s45, 7\ns_add_u32 s45, s45, {TKB - 256}")
    A(f"s_lshl_b32 s80, s2, 2\ns_add_u32 s80, s80, {sW}\ns_cmp_eq_u32 s80, 1021\ns_cbranch_scc0 L_notk\nv_mov_b32 v69, s44\nv_lshlrev_b32 v70, 7, {vL}\ns_mov_b64 exec, 0xffff")
    A(f"buffer_store_dword v69, v70, {WS}, 0 offen offset:{TKB} sc1\ns_mov_b64 exec, -1\nL_notk:")
k_issue(KS[1], KS[2])
if P["LATE"]: late_setup()
A("s_waitcnt vmcnt(%d)\ns_barrier" % (KS[2] - 3))
A(f"s_cmp_eq_u32 {sROLE}, 1\ns_cbranch_scc0 L_noh")
proj("v146", 0, "v30", "s85", "v191")
A("L_noh:")
stamp("hpub")
if P["XL"]: A("ds_write_b128 v24, v[20:23]")
def qgather(r=32):
    for i in range(2): A(f"buffer_load_dwordx4 {vr(r + 4 * i, 4)}, v31, {WS}, s87 offen offset:{256 * i} {PLD}")
def hgather():
    for i in range(2): A(f"buffer_load_dwordx4 {vr(132 + 4 * i, 4)}, v12, {WS}, s90 offen offset:{64 * i} {PLD}")
k_issue(KS[2], 16)
seq = []
Q2 = P["QG2"]
for a in range(3):
    if a == NV0:
        if P["FAST"] == 1: A(f"v_and_b32 v18, 28, {vL}\nv_add_u32 v18, s92, v18\nglobal_load_dword v18, v18, s[72:73] sc1")
        qgather(); seq += ["q1"] * 2
        stamp("qg_iss")
    if Q2 and a == NV0 + Q2: qgather(40); seq += ["q2"] * 2
    if a == 2: hgather(); seq += ["h"] * 2
    kv_dma(V, VO, LV, a); seq += ["v"] * 4
V3E = P["V3E"]
if V3E: kv_dma(V, VO, LV, 3); seq += ["v"] * 4
stamp("v2_iss")
A("s_waitcnt vmcnt(%d)" % seq[::-1].index("q1"))
for a in range(3):
    for j in range(4): A("ds_read_b128 %s, v%d offset:%d" % (vr(64 + 16 * a + 4 * j, 4), 152 + j, 256 * a))
if P["FAST"] == 1: A(f"v_cmp_ne_u32 vcc, s70, v18\ns_cmp_lg_u64 vcc, 0\ns_cselect_b32 {sFAST}, 1, 0")
if P["FAST"] == 1:
    A(f"s_cbranch_scc0 L_norep\nbuffer_store_dword v190, v29, {WS}, s84 offen sc1\ns_cmp_eq_u32 {sROLE}, 1\ns_cbranch_scc0 L_norep\nbuffer_store_dword v191, v30, {WS}, s85 offen sc1\nL_norep:")
if Q2:
    untag(32, 8, 48)
    A("s_cbranch_vccz L_qok\ns_mov_b64 exec, vcc\ns_waitcnt vmcnt(%d)" % seq[::-1].index("q2"))
    for e in range(8): A("v_mov_b32 v%d, v%d" % (32 + e, 40 + e))
A("s_branch L_qchk\nL_qagain:")
qgather()
A("s_waitcnt vmcnt(0)\nL_qchk:")
untag(32, 8, 48)
retry("L_qagain", "L_qok")
stamp("q_ok")
rscatter8(32)
A("v_cvt_pk_bf16_f32 v32, v32, v33\nds_write_b32 v156, v32\ns_waitcnt lgkmcnt(0)\ns_barrier")
QB = 168
for j in range(4): A("ds_read_b128 %s, v157 offset:%d" % (vr(QB + 4 * j, 4), 64 * j))
for j in range(4): A("ds_read_b128 %s, v%d offset:%d" % (vr(112 + 4 * j, 4) if j < 3 else "v[128:131]", 152 + j, 256 * 3))
for j in range(4):
    A("s_waitcnt lgkmcnt(%d)" % (7 - j))
    for a in range(3): mfma(48 + 4 * a, 64 + 16 * a + 4 * j, QB + 4 * j, "0" if j == 0 else None)
A("s_waitcnt lgkmcnt(0)")
for j in range(4): mfma(60, 112 + 4 * j if j < 3 else 128, QB + 4 * j, "0" if j == 0 else None)
stamp("qk")
if not V3E: kv_dma(V, VO, LV, 3)
stamp("v3_iss")
def wo_dma(pos):
    if P["WOP"] == pos: tile_dma(WO, "v13", "s89", 1024, LWO, (0, 8, 4, 12))
wo_dma(0)
rbf2(48, 49, 48, 52, 53); rbf2(50, 51, 56, 60, 54)
for e in range(4): A("v_mul_f32 v%d, 0x3db504f3, v%d" % (48 + e, 48 + e))
rbf2(48, 49, 48, 49, 52); rbf2(50, 51, 50, 51, 53)
A("v_max_f32 v52, v48, v49\nv_max3_f32 v52, v52, v50, v51")
ROW = ("quad_perm:[1,0,3,2]", "quad_perm:[2,3,0,1]", "row_half_mirror", "row_mirror")
for c in ROW: A("v_max_f32_dpp v52, v52, v52 %s %s" % (c, DPP))
A("ds_write_b32 v9, v52\ns_mov_b32 s80, 0x3fb8aa3b\ns_waitcnt lgkmcnt(0)\ns_barrier\nds_read_b128 v[52:55], v8\ns_waitcnt lgkmcnt(0)")
A("v_max_f32 v52, v52, v53\nv_max3_f32 v56, v52, v54, v55\nv_mul_f32 v52, 0xbfb8aa3b, v56")
for e in range(4): A("v_fma_f32 v%d, v%d, s80, v52" % (48 + e, 48 + e))
for e in range(4): A("v_exp_f32 v%d, v%d" % (48 + e, 48 + e))
A("v_add_f32 v52, v48, v49\nv_cvt_pk_bf16_f32 v54, v48, v49\nv_add_f32 v53, v50, v51\nv_cvt_pk_bf16_f32 v55, v50, v51\nv_add_f32 v52, v52, v53\nds_write_b64 v10, v[54:55]")
for c in ROW: A("v_add_f32_dpp v52, v52, v52 %s %s" % (c, DPP))
A("ds_write_b32 v9, v52 offset:64")
wo_dma(1)
stamp("p_done")
def wreads(r, off):
    for mt in range(4):
        for h in range(2): A("ds_read_b64_tr_b16 %s, v%d offset:%d" % (vr(r + 4 * mt + 2 * h, 2), 148 + mt, off + h * 2048))
def wstage(a, b, addr):
    for mt in range(4): mfma(32 + 4 * mt, a + 4 * mt, b, "0")
    for mt in (0, 2): A("ds_write2_b32 %s, v%d, v%d offset0:%d offset1:%d" % (addr, 32 + 4 * mt, 36 + 4 * mt, 16 * mt, 16 * mt + 16))
A(f"s_cmp_eq_u32 {sROLE}, 2\ns_cbranch_scc0 L_noffn")
wreads(80, LF - LWO)
A("s_waitcnt vmcnt(%d)" % (8 if P["WOP"] == 2 else 12))
A("s_branch L_hchk\nL_hagain:")
hgather()
A("s_waitcnt vmcnt(0)\nL_hchk:")
untag(132, 8, 140)
retry("L_hagain", "L_hok")
rscatter8(132)
A("v_max_f32 v132, 0, v132\nv_max_f32 v133, 0, v133\nv_cvt_pk_bf16_f32 v132, v132, v133")
quad_b(136, 132)
A("s_waitcnt lgkmcnt(0)")
wstage(80, 136, "v161")
A("L_noffn:")
stamp("ffn")
wo_dma(2)
A("s_waitcnt vmcnt(8) lgkmcnt(0)\ns_barrier")
stamp("v012")
A("ds_read_b128 v[60:63], v8 offset:64")
def vreads(t, r):
    A("ds_read_b128 %s, v11 offset:%d" % (vr(64 + 4 * t, 4), 64 * t))
    vreads2(t, r)
def vreads2(t, r):
    for mt in range(2):
        for h in range(2): A("ds_read_b64_tr_b16 %s, v%d offset:%d" % (vr(r + 4 * mt + 2 * h, 2), 27 + mt, t * 8192 + h * 4096))
R3 = (96, 104, 112)
vreads(0, 96); vreads(1, 104)
A(f"v_mov_b32 v58, {sE}\nv_mov_b32 v59, {sE}\ns_lshl_b32 s80, {sW}, 4\ns_waitcnt lgkmcnt(10)")
A("v_add_f32 v60, v60, v61\nv_add_f32 v62, v62, v63")
vreads(2, 112)
A("v_add_f32 v57, v60, v62\ns_lshl_b64 exec, 1, s80")
gstore(f"buffer_store_dwordx4 v[56:59], v160, {WS}, s36 offen", "L_ss")
A("s_mov_b64 exec, -1")
for t in range(6):
    A("s_waitcnt lgkmcnt(%d)" % (10 if t < 4 else (7, 2)[t - 4]))
    for mt in range(2): mfma(40 + 4 * mt, R3[t % 3] + 4 * mt, 64 + 4 * t, "0" if t == 0 else None)
    if t + 3 < 6: vreads(t + 3, R3[t % 3])
    if t == 3: A("ds_read_b128 v[88:91], v11 offset:384\nds_read_b128 v[92:95], v11 offset:448")
def sgather(r=184): A(f"buffer_load_dwordx4 {vr(r, 4)}, v159, {WS}, s46 offen {PLD}")
def reduce_pub(d, addr, off, soff):
    for i in range(4): A("ds_read_b128 %s, %s offset:%d" % (vr(d + 4 * i, 4), addr, off + 1024 * i))
    A("s_waitcnt lgkmcnt(2)")
    for e in range(0, 4, 2): A("v_pk_add_f32 %s, %s, %s" % (vr(d + e, 2), vr(d + e, 2), vr(d + 4 + e, 2)))
    A("s_waitcnt lgkmcnt(0)")
    for e in range(0, 4, 2): A("v_pk_add_f32 %s, %s, %s" % (vr(d + 8 + e, 2), vr(d + 8 + e, 2), vr(d + 12 + e, 2)))
    for e in range(0, 4, 2): A("v_pk_add_f32 %s, %s, %s" % (vr(d + e, 2), vr(d + e, 2), vr(d + 8 + e, 2)))
    tag(d)
    A(f"buffer_store_dwordx4 {vr(d, 4)}, v166, {WS}, {soff} offen {PST}")
sgather()
if P["GE"]:
    A(f"s_lshl_b32 s80, {sW}, 2\ns_add_u32 s80, s80, {sROLE}\ns_cmp_eq_u32 s80, 6\ns_cbranch_scc0 L_nog")
    reduce_pub(168, "v165", 4096, "s40")
    A("s_waitcnt vmcnt(7)\ns_branch L_gdone\nL_nog:")
stamp("pv1")
A("s_waitcnt vmcnt(6)\nL_gdone:\ns_barrier")
stamp("v3")
vreads2(6, 96); vreads2(7, 104)
for t in (6, 7):
    A("s_waitcnt lgkmcnt(%d)" % (4 * (7 - t)))
    for mt in range(2): mfma(40 + 4 * mt, R3[t - 6] + 4 * mt, 64 + 4 * t)
A(f"v_bfi_b32 v48, {vFF}, v142, v40\nv_bfi_b32 v49, {vFF}, v143, v44")
gstore(f"buffer_store_dwordx2 v[48:49], v158, {WS}, s37 offen", "L_os")
stamp("o_pub")
def ogather():
    for sh in range(2):
        for i in range(2): A(f"buffer_load_dwordx4 {vr(64 + 8 * sh + 4 * i, 4)}, v12, {WS}, s88 offen offset:{512 * sh + 64 * i} {PLD}")
SCHK = f"v_bitop3_b32 v186, v186, v187, {sE} bitop3:0x7e\nv_cmp_ne_u32 vcc, 0, v186"
if P["SG2"]:
    sgather(56); ogather()
    A("s_waitcnt vmcnt(6)")
    stamp("wo_land")
    A(SCHK)
    wreads(96, 0)
    A("s_cbranch_vccz L_sok2\ns_mov_b64 exec, vcc\ns_waitcnt vmcnt(4)")
    for e in range(4): A("v_mov_b32 v%d, v%d" % (184 + e, 56 + e))
    A(SCHK + "\ns_cbranch_vccz L_sok1\ns_mov_b64 exec, vcc\nL_sagain:")
    sgather()
    A("s_waitcnt vmcnt(0)\n" + SCHK)
    retry("L_sagain", "L_sok")
    ogather()
    A("L_sok1:\ns_mov_b64 exec, -1\nL_sok2:")
else:
    ogather()
    A("s_waitcnt vmcnt(5)")
    stamp("wo_land")
    wreads(96, 0)
    A("s_branch L_schk\nL_sagain:")
    sgather()
    A("s_waitcnt vmcnt(0)\nL_schk:\n" + SCHK)
    retry("L_sagain", "L_sok")
A(f"v_max_f32_dpp v60, v184, v184 quad_perm:[1,0,3,2] {DPP}")
allred_g("v_max_f32", 60, 61)
A("v_sub_f32 v60, v184, v60\nv_mul_f32 v60, 0x3fb8aa3b, v60\nv_exp_f32 v60, v60\nv_mul_f32 v61, v60, v185")
A(f"v_add_f32_dpp v61, v61, v61 quad_perm:[1,0,3,2] {DPP}")
allred_g("v_add_f32", 61, 62)
A("v_rcp_f32 v61, v61\nv_mul_f32 v60, v60, v61")
A(f"v_mov_b32_dpp v62, v60 quad_perm:[0,0,0,0] {DPP}\nv_mov_b32_dpp v63, v60 quad_perm:[1,1,1,1] {DPP}")
stamp("st_ok")
A("s_branch L_ow\nL_oagain:")
ogather()
A("L_ow:\ns_waitcnt vmcnt(0)")
untag(64, 16, 61)
retry("L_oagain", "L_ook")
stamp("o_ok")
def ticket():
    A(f"v_mov_b32 v60, 1\ns_mov_b64 exec, 1\nbuffer_atomic_add v60, v160, {WS}, s45 offen sc0 sc1\ns_mov_b64 exec, -1")
if P["TK"] == 3:
    A(f"s_cmp_ge_u32 {sW}, 2\ns_cbranch_scc0 L_tk3"); ticket(); A("L_tk3:")
for e in range(0, 8, 2): A("v_pk_mul_f32 %s, %s, v[62:63] op_sel_hi:[1,0]" % (vr(64 + e, 2), vr(64 + e, 2)))
for e in range(0, 8, 2): A("v_pk_fma_f32 %s, %s, v[62:63], %s op_sel:[0,1,0]" % (vr(64 + e, 2), vr(72 + e, 2), vr(64 + e, 2)))
rscatter8(64, True)
A("v_cvt_pk_bf16_f32 v64, v64, v65")
quad_b(68, 64)
A("s_waitcnt lgkmcnt(0)")
wstage(96, 68, "v147")
if not P["GE"]: A(f"v_add_u32 v165, {sW4K}, v165\ns_cmp_eq_u32 {sW}, 0\ns_cselect_b32 s47, s47, s40")
if P["TK"] == 2:
    A(f"s_cmp_ge_u32 {sW}, 2\ns_cbranch_scc0 L_tk2"); ticket(); A("L_tk2:")
A(f"s_cmp_ge_u32 {sW}, 2\ns_waitcnt lgkmcnt(0)\ns_barrier\ns_cbranch_scc1 L_final")
if P["GE"]: A(f"s_cmp_eq_u32 {sW}, 0\ns_cbranch_scc0 L_done")
else: A(f"s_lshl_b32 s80, {sW}, 1\ns_andn2_b32 s80, s80, {sROLE}\ns_cbranch_scc1 L_done")
reduce_pub(32, "v165", 0, "s47")
stamp("s_pub")
A("s_branch L_done")
A("L_final:")
if P["TK"]:
    if P["TK"] >= 2: A("s_branch L_tkw")
    A("L_tkagain:"); ticket()
    A(f"""L_tkw:
s_waitcnt vmcnt(0)
v_readfirstlane_b32 s41, v60
s_xor_b32 s41, s41, s44
s_cmp_lt_u32 s41, 32
s_cbranch_scc1 L_tkok
s_add_u32 {sSPIN}, {sSPIN}, 1
s_cmp_lt_u32 {sSPIN}, {P["SPIN"]}
s_cbranch_scc1 L_tkagain
s_branch L_done
L_tkok:
s_sub_u32 s41, s41, 28
s_cbranch_scc1 L_done
s_lshl_b32 s41, s41, 4
s_bfe_u32 s80, s45, 0x40007
s_add_u32 s41, s41, s80
s_mul_i32 s42, s41, 6144
s_add_u32 s42, s42, {SP}
s_add_u32 s43, s42, 4096
s_lshl_b32 s83, s41, 6""")
    stamp("tk")
    if STAMP: A(f"s_mov_b32 {sSPIN}, 100")
else: A(f"s_cmp_eq_u32 {sW}, 2\ns_cbranch_scc0 L_done\ns_cmp_lt_u32 s41, 64\ns_cbranch_scc0 L_done")
if P["XL"]: A(f"s_lshr_b32 s80, s41, 4\ns_lshl_b32 s80, s80, 6\ns_add_u32 s80, s80, s83\ns_add_u32 s80, s80, {LXN}\nv_add_u32 v62, s80, v167")
else: A(f"buffer_load_ushort v60, v167, {X}, s83 offen")
def pka(d, a, b, n):
    for e in range(0, n, 2): A("v_pk_add_f32 %s, %s, %s" % (vr(d + e, 2), vr(a + e, 2), vr(b + e, 2)))
def ggather(l):
    A(f"buffer_load_dwordx4 v[48:51], v164, {WS}, s43 offen {PLD}")
    for e in range(4): A("v_mov_b32 v%d, %s" % (52 + e, sT[e]))
    A(f"s_mov_b32 s80, exec_hi\ns_and_b32 exec_hi, exec_hi, 0xffff\ns_cbranch_execz {l}\nbuffer_load_dwordx4 v[52:55], v164, {WS}, s43 offen offset:1024 {PLD}\n{l}:\ns_mov_b32 exec_hi, s80")
def fgather():
    for i in range(4): A(f"buffer_load_dwordx4 {vr(32 + 4 * i, 4)}, v164, {WS}, s42 offen offset:{1024 * i} {PLD}")
def red8(r):
    for e in range(2): A("v_permlane32_swap_b32 v%d, v%d" % (r + e, r + 2 + e))
    pka(r, r, r + 2, 2)
    A("v_permlane16_swap_b32 v%d, v%d\nv_add_f32 v%d, v%d, v%d\nv_add_f32_dpp v%d, v%d, v%d row_ror:8 %s" % (r, r + 1, r, r, r + 1, r, r, r, DPP))
    rbf(r)
ggather("L_gs1")
if P["FIN"] == 2: A("s_waitcnt vmcnt(0)")
fgather()
if P["XL"]: A("ds_read_u16 v60, v62")
A("s_waitcnt vmcnt(4) lgkmcnt(0)\ns_branch L_gchk\nL_gagain:")
ggather("L_gs2")
A("s_waitcnt vmcnt(0)\nL_gchk:")
untag(48, 8, 61)
retry("L_gagain", "L_gok")
pka(48, 48, 52, 4)
A("v_lshlrev_b32 v60, 16, v60")
red8(48)
A("v_mul_f32 v49, 0xbfb8aa3b, v48\nv_exp_f32 v49, v49\nv_add_f32 v49, 1.0, v49\nv_rcp_f32 v49, v49\nv_mul_f32 v48, v48, v49")
rbf(48)
A("s_branch L_fchk\nL_fagain:")
fgather()
A("L_fchk:\ns_waitcnt vmcnt(0)")
untag(32, 16, 61)
retry("L_fagain", "L_fok")
stamp("f_ok")
pka(32, 32, 40, 8); pka(32, 32, 36, 4)
red8(32)
A("v_mul_f32 v32, v32, v48"); rbf(32)
A("v_add_f32 v32, v60, v32\nv_cvt_pk_bf16_f32 v32, v32, v32")
A(f"s_mov_b32 exec_lo, 0x00ff00ff\ns_mov_b32 exec_hi, 0x00ff00ff\nbuffer_store_short v32, v167, {OUT}, s83 offen")
A(f"s_cmp_eq_u32 s41, 0\ns_cbranch_scc0 L_done\nv_mov_b32 v33, {sE}\ns_mov_b64 exec, 1\nbuffer_store_dword v33, v160, {WS}, 0 offen")
A("L_done:")
if P["DIAG"]:
    stamp("end")
    A("s_sub_u32 s94, s94, s96\ns_lshl_b32 s94, s94, 2\ns_add_u32 s94, s94, 4000\nL_diag:\ns_memrealtime s[98:99]\ns_waitcnt lgkmcnt(0)\ns_sub_u32 s98, s98, s96\ns_cmp_lt_u32 s98, s94\ns_cbranch_scc1 L_diag")
if STAMP:
    A("s_mov_b64 exec, -1")
    stamp("end")
    A(f"v_writelane_b32 v127, {sSPIN}, 61\nv_writelane_b32 v127, {sFAST}, 59")
    A(f"s_lshl_b32 s80, s2, 10\ns_add_u32 s80, s80, {STP}\nv_lshlrev_b32 v7, 2, v0\nbuffer_store_dword v127, v7, {WS}, s80 offen")
A("L_end:\ns_endpgm\n.fill 8448 - (. - %s), 1, 0" % KN if not STAMP else "L_end:\ns_endpgm\n.fill 2048, 1, 0")
hdr = open("recurrent_scan__sliding_block_cached__dense_activation_relu__decode.s.ref").read().split("; Override launch")[0]
print(hdr + "; @launch grid=(256,1,1) block=(256,1,1) lds=%d" % LDS_BYTES)
print('.amdgcn_target "amdgcn-amd-amdhsa--gfx950"\n.text\n.globl %s\n.p2align 8\n.type %s,@function\n%s:' % (KN, KN, KN))
print(A.text())
print('.section .rodata,"a"\n.p2align 6\n.amdhsa_kernel %s\n  .amdhsa_next_free_vgpr 192\n  .amdhsa_next_free_sgpr 102\n  .amdhsa_accum_offset 192\n  .amdhsa_group_segment_fixed_size 0\n  .amdhsa_kernarg_size 88\n  .amdhsa_user_sgpr_count 2\n  .amdhsa_user_sgpr_kernarg_segment_ptr 1\n  .amdhsa_system_sgpr_workgroup_id_x 1\n.end_amdhsa_kernel' % KN)
```

```python
import sys
from asmlib import Asm
KN = "recurrent_scan__sliding_block_cached__dense_activation_relu__decode_kernel"
P = dict(W2P=1, F2=1, NF=7, FB=1, SWP=1, RS=1, KX=4, STS="", WOP=1, ROT=20992, FAST=1, X1=2, XO=2, XL=1, SG2=1, FIN=1, TLB=0, FLP=2, V3E=0, LATE=1, PRE=0, TK=1, GE=1, QG2=2, KS="4+6+10", NK0=2, NV0=0, PKV="nt", PW="nt", STAMP=0, SPIN=200000, WARM=2, QX=0, PSTG="sc1", FINE=0, SLEEP=0, PST="sc1", PLD="sc1", K2E=1, DIAG="")
for a in sys.argv[1:]:
    k, v = a.split("=")
    P[k] = type(P[k])(v) if v != "def" else ""
if P["W2P"]: P["GE"] = 0
PSTG = P["PSTG"]
PST, PLD = P["PST"].replace("_", " "), P["PLD"].replace("_", " ")
NK0, NV0, PKV, PW, STAMP = P["NK0"], P["NV0"], P["PKV"], P["PW"], P["STAMP"]
LV, LK, LF, LS = 0, 65536, 131072, 147456
LWQ, LWO = LV, LK + 49152
LXN = LS; LQ = LXN + 4352; LMX = LQ + 1280; LL = LMX + 64; LP = LL + 64; LRS = LP + 2304 + 128; LRG = LRS + 4096
LDS_BYTES = LRG + 4096
assert LRS % 256 == 0 and LDS_BYTES <= 163840
QP, HP, ST, OP, SP, WSZ = 0x1000, 0x41000, 0x79000, 0x80000, 0x100000, 0x160000
STP = 0x200000
TKB = 0x800
DPP = "row_mask:0xf bank_mask:0xf"
A = Asm()
nst = [0]
def stamp(name):
    if P["DIAG"] == name: A("s_memrealtime s[94:95]\ns_waitcnt lgkmcnt(0)")
    if not STAMP or (P["STS"] and name not in P["STS"].split("+")): return
    i = nst[0]; nst[0] += 1
    A("s_memrealtime s[98:99]\ns_waitcnt lgkmcnt(0)\nv_writelane_b32 v127, s98, %d ; stamp %s" % (i, name))
    print("stamp", i, name, file=sys.stderr)
X, WQ, K, V, WO, WF, WS, OUT = ("s[%d:%d]" % (i, i + 3) for i in range(4, 36, 4))
sW, sHKV, sLO, sHI, sROLE, sE = "s52", "s53", "s55", "s56", "s57", "s60"
sT = ["s61", "s62", "s63", "s64"]
sKV, sW4K = "s58", "s59"
sM0, sM1, sM2, sM3, sM01 = "s[66:67]", "s[68:69]", "s[70:71]", "s[72:73]", "s[74:75]"
sF0, sF1 = "s76", "s77"
sSPIN = "s78"
sKS, sCO, sC2 = "s66", "s67", "s68"
vL, vN, vG, vU, vHB, vFF = "v1", "v2", "v3", "v4", "v5", "v6"
def vr(a, n): return "v[%d:%d]" % (a, a + n - 1)

def tile_dma(srd, voff, sbase, pitch, lds, rows=(0, 8, 16, 24)):
    A("s_add_u32 m0, %s, %d" % (sW4K, lds))
    for i in range(4):
        if i: A("s_add_i32 %s, %s, %d" % (sbase, sbase, (rows[i] - rows[i - 1]) * pitch - 1024))
        A("buffer_load_dwordx4 %s, %s, %s offen offset:%d %s lds" % (voff, srd, sbase, 1024 * i, PW))
def kv_dma(srd, voffs, lds, a, i0=0, i1=4):
    if i0 == i1: return
    if srd == K:
        if i0 == 0:
            d = a ^ (a - 1)
            for v in voffs: A("v_xor_b32 %s, %d, %s" % (v, d << 14 | d << 6, v))
        A("s_add_u32 m0, %s, %d" % (sW4K, lds + a * 16384))
        for i in range(i0, i1): A("global_load_lds_dwordx4 %s, s[38:39] offset:%d %s" % (voffs[i], 1024 * i, PKV))
        return
    A("s_add_u32 m0, %s, %d\ns_xor_b32 s79, %s, %d" % (sW4K, lds + a * 16384, sKV, a * 16384))
    for i in range(i0, i1):
        A("buffer_load_dwordx4 %s, %s, s79 offen offset:%d %s lds" % (voffs[i % len(voffs)], srd, 1024 * i, PKV))
def tag(r):
    for e in range(4): A("v_bfi_b32 v%d, %s, %s, v%d" % (r + e, vFF, sT[e], r + e))
def untag(r, n, t):
    for e in range(n): A("v_xor_b32 v%d, %s, v%d" % (r + e, sT[e % 4], r + e))
    A("v_or3_b32 v%d, v%d, v%d, v%d" % (t, r, r + 1, r + 2))
    i = 3
    while i + 1 < n:
        A("v_or3_b32 v%d, v%d, v%d, v%d" % (t, t, r + i, r + i + 1)); i += 2
    A("v_bitop3_b32 v%d, v%d, v%d, %s bitop3:0xa8" % (t, t, r + i, vFF))
    A("v_cmp_ne_u32 vcc, 0, v%d" % t)
def retry(lbl_again, lbl_ok):
    A("s_cbranch_vccz %s\ns_mov_b64 exec, vcc\n" % lbl_ok + ("s_sleep %d\n" % P["SLEEP"] if P["SLEEP"] else "") + "s_add_u32 %s, %s, 1\ns_cmp_lt_u32 %s, %d\ns_cbranch_scc1 %s\n%s:" % (sSPIN, sSPIN, sSPIN, P["SPIN"], lbl_again, lbl_ok))
    A("s_mov_b64 exec, -1")
def rscatter8(r, alt=False):
    for e in range(4): A("v_permlane32_swap_b32 v%d, v%d" % (r + e, r + 4 + e))
    for e in range(0, 4, 2): A("v_pk_add_f32 %s, %s, %s" % (vr(r + e, 2), vr(r + e, 2), vr(r + 4 + e, 2)))
    pr = ((0, 1), (2, 3)) if alt else ((0, 2), (1, 3))
    for a, b in pr: A("v_permlane16_swap_b32 v%d, v%d" % (r + a, r + b))
    for e, (a, b) in enumerate(pr): A("v_add_f32 v%d, v%d, v%d" % (r + e, r + a, r + b))
def allred_g(op, r, t):
    A("v_mov_b32 v%d, v%d\nv_permlane16_swap_b32 v%d, v%d\n%s v%d, v%d, v%d" % (t, r, r, t, op, r, r, t))
    A("v_mov_b32 v%d, v%d\nv_permlane32_swap_b32 v%d, v%d\n%s v%d, v%d, v%d" % (t, r, r, t, op, r, r, t))
def allred64(r, t):
    for c in ("quad_perm:[1,0,3,2]", "quad_perm:[2,3,0,1]", "row_half_mirror", "row_mirror"):
        A("v_add_f32_dpp v%d, v%d, v%d %s %s" % (r, r, r, c, DPP))
    allred_g("v_add_f32", r, t)
def rbf(r):
    A("v_cvt_pk_bf16_f32 v%d, v%d, v%d\nv_and_b32 v%d, 0xffff0000, v%d" % (r, r, r, r, r))
def rbf2(d0, d1, a, b, t):
    A("v_cvt_pk_bf16_f32 v%d, v%d, v%d\nv_lshlrev_b32 v%d, 16, v%d\nv_and_b32 v%d, 0xffff0000, v%d" % (t, a, b, d0, t, d1, t))
def quad_b(dst, src):
    for i, r in enumerate((0, 1, 2, 3)):
        A("v_mov_b32_dpp v%d, v%d quad_perm:[%d,%d,%d,%d] %s" % (dst + i, src, r, r, r, r, DPP))
def mfma(d, a, b, c=None):
    A("v_mfma_f32_16x16x32_bf16 %s, %s, %s, %s" % (vr(d, 4), vr(b, 4), vr(a, 4), vr(d, 4) if c is None else c))

sFAST = "s69"
def gstore(ins, lbl):
    if P["FAST"] == 0: A(ins + " sc1"); return
    if P["FAST"] == 2: A(ins); return
    A(f"s_cmp_eq_u32 {sFAST}, 0\ns_cbranch_scc1 {lbl}_f\n{ins} sc1\ns_branch {lbl}_e\n{lbl}_f:\n{ins}\n{lbl}_e:")
def role_wait(n, extra, lbl, role, tail=""):
    A(f"s_cmp_{role}\ns_cbranch_scc1 {lbl}\ns_waitcnt vmcnt({n})\n{lbl}:\ns_waitcnt vmcnt({n + extra}) {tail}")
KO = ["v14", "v15", "v16", "v17"]; VO = ["v144", "v145"]
KS = [int(x) for x in P["KS"].split("+")] + [16]
HEAD = KS[0]
def k_issue(p0, p1):
    while p0 < p1:
        a = p0 // 4; e = min(p1, 4 * a + 4)
        kv_dma(K, KO, LK, a, p0 - 4 * a, e - 4 * a); p0 = e
nk = [0]
assert KS[2] + P["KX"] <= 16
W2P = P["W2P"]; KX = P["KX"] if W2P else 0
def k_role(p0, p1):
    if not KX: k_issue(p0, p1); return
    nk[0] += 1; l = "L_k%d" % nk[0]
    A(f"s_cmp_eq_u32 {sROLE}, 1\ns_cbranch_scc1 {l}a"); k_issue(min(p0 + KX, 16), min(p1 + KX, 16))
    A(f"s_branch {l}b\n{l}a:"); k_issue(p0, p1); A(f"{l}b:")
if STAMP or P["DIAG"]: A("s_memrealtime s[96:97]")
A(f"""
s_load_dwordx16 s[36:51], s[0:1], 0
s_load_dwordx4 s[72:75], s[0:1], 72
s_getpc_b64 s[80:81]
v_mad_u64_u32 v[162:163], vcc, v0, 32, s[80:81]
s_cmpk_ge_u32 s2, 256
s_cbranch_scc1 L_end
global_load_dword v162, v[162:163], off
v_readfirstlane_b32 {sW}, v0
v_lshrrev_b32 v9, 3, v0
v_lshlrev_b32 v8, 4, v0                 ; x offset
v_bitop3_b32 v10, v9, v0, 7 bitop3:0x28
s_and_b32 {sHKV}, s2, 7
s_lshr_b32 {sHI}, s2, 5
s_lshl3_add_u32 s81, {sHKV}, {sHI}
s_and_b32 s80, s2, 24
s_lshl_b32 s80, s80, 10
s_add_u32 s81, s81, s80
s_lshl_b32 s81, s81, 7
v_lshl_add_u32 v11, v9, 9, v10
s_bfm_b32 s82, 8, 10
v_lshl_add_u32 v11, v11, 4, s81
s_lshl_b32 m0, {sW}, 6
v_add_u32 v12, s82, v11
v_add_u32 v13, s82, v12
v_add_u32 v18, s82, v13
s_and_b32 {sKV}, s2, 31
s_lshl_b32 {sKV}, {sKV}, 5
s_add_u32 {sKV}, {sKV}, {sHI}
s_addk_i32 {sKV}, 24
s_lshl_b32 {sKV}, {sKV}, 16
s_lshl1_add_u32 {sKV}, s80, {sKV}
s_movk_i32 s82, 3072
v_add_u32 v14, {sKV}, v8
v_xad_u32 v15, v14, 16, s82
v_xad_u32 v16, v15, 48, s82
s_waitcnt lgkmcnt(0)
global_load_dwordx4 v[20:23], v8, s[36:37]
s_load_dword {sE}, s[74:75], 0
global_load_lds_dwordx4 v11, s[42:43] {PW}
global_load_lds_dwordx4 v12, s[42:43] offset:1024 {PW}
global_load_lds_dwordx4 v13, s[42:43] offset:2048 {PW}
global_load_lds_dwordx4 v18, s[42:43] offset:3072 {PW}
s_bitset1_b32 m0, 16
v_xad_u32 v17, v16, 16, s82
global_load_lds_dwordx4 v14, s[38:39] {PKV}
global_load_lds_dwordx4 v15, s[38:39] offset:1024 {PKV}
global_load_lds_dwordx4 v16, s[38:39] offset:2048 {PKV}
global_load_lds_dwordx4 v17, s[38:39] offset:3072 {PKV}
L_head_end:
s_load_dwordx2 s[32:33], s[0:1], 64
s_lshl_b32 {sW4K}, {sW}, 6
s_lshr_b32 {sW}, {sW}, 6
s_bfe_u32 {sLO}, s2, 0x20003
s_getreg_b32 s70, hwreg(HW_REG_XCC_ID, 0, 4)
s_lshl_b32 s92, {sHKV}, 5
s_or_b32 s70, s70, 0x80
s_lshr_b32 s93, s2, 3
s_add_u32 s93, s93, s92
v_mov_b32 v19, s70
v_mov_b32 v18, s93
s_cmp_eq_u32 {sW}, 3
s_cbranch_scc0 L_nox""")
if P["FAST"] == 1: A("s_mov_b64 exec, 1\nglobal_store_byte v18, v19, s[72:73]\ns_mov_b64 exec, -1")
A(f"""L_nox:
v_lshlrev_b32 v10, 4, v10
s_mov_b32 s26, 1835008
s_mov_b32 s27, 0x20000
s_mov_b32 {sROLE}, 0
s_cmp_gt_u32 {sHKV}, {P['NF']}
s_subb_u32 s91, {sHKV}, 0
s_and_b32 {sF0}, {sHI}, 3
s_lshl2_add_u32 {sF0}, s91, {sF0}
s_xor_b32 {sF0}, {sF0}, {P['X1']}
s_xor_b32 {sCO}, {sHI}, {P['XO']}
s_bfe_u32 {sC2}, s2, 0x30003
s_bfe_u32 {sF1}, s2, 0x10006
s_lshl1_add_u32 {sF1}, s91, {sF1}
s_lshl2_add_u32 s90, {sF1}, {sW}        ; 4*rb+w
s_cmp_eq_u32 {sHKV}, {P['NF']}
s_cbranch_scc1 L_now3
s_cmp_lt_u32 s2, 128
s_cbranch_scc{P['RS']} L_now1
s_mov_b32 {sROLE}, 1
s_mov_b64 s[24:25], s[48:49]
v_mul_u32_u24 v12, 3584, v9
s_mul_i32 s83, {sLO}, 3584
s_add_u32 s83, s83, {sF0}
s_lshl_b32 s83, s83, 7                  ; w1 base
v_add_u32 v12, v12, v10                 ; w1 voffset
""")
tile_dma(WF, "v12", "s83", 3584, LF, (0, 32, 64, 96))
A(f"""s_branch L_now2
L_now1:
s_mov_b32 {sROLE}, 2
s_mov_b64 s[24:25], s[50:51]
v_bfe_u32 v7, v9, 2, 1
v_and_b32 v13, 2, v9
v_add_u32 v13, v13, v7
v_and_b32 v18, 1, v9
v_lshl_add_u32 v13, v13, 1, v18
s_lshl_b32 s91, s90, 8
s_add_u32 s91, s91, {sC2}
s_lshl_b32 s91, s91, 7                  ; w2 base
v_lshl_add_u32 v188, v13, 10, v10
""")
def w2_dma(): tile_dma(WF, "v188", "s91", 1024, LF, (0, 16, 8, 24))
if not W2P: w2_dma()
A("L_now3:")
k_issue(4, 4 + KX)
A("L_now2:")
NS = 0
A(f"""
v_and_b32 {vL}, 63, v0
s_add_u32 {sKV}, {sKV}, {sW4K}
v_lshrrev_b32 {vG}, 4, {vL}
s_mov_b64 s[4:5], s[36:37]
s_mov_b32 s6, 4096
s_mov_b32 s7, 0x20000
""")
k_role(4, HEAD)
if STAMP: A("v_mov_b32 v127, 0\nv_writelane_b32 v127, s96, 63\nv_writelane_b32 v127, s70, 62\ns_getreg_b32 s98, hwreg(HW_REG_HW_ID)\nv_writelane_b32 v127, s98, 58")
if P["DIAG"]: A("s_mov_b32 s94, s96")
stamp("issued0")
if STAMP and "ka" in P["STS"]:
    for n, r in (("pre_ka", "s94"), ("ka", "s100")):
        A("v_writelane_b32 v127, %s, %d ; stamp %s" % (r, nst[0], n)); nst[0] += 1
A(f"""
s_mov_b64 s[16:17], s[40:41]
s_mov_b32 s18, 0x4000000
s_mov_b32 s19, 0x20000
s_mov_b64 s[20:21], s[44:45]
s_mov_b32 s22, 0x400000
s_mov_b32 s23, 0x20000
s_mov_b64 s[28:29], s[74:75]
s_mov_b32 s30, {0x400000 if STAMP else WSZ}
s_mov_b32 s31, 0x20000
s_mov_b32 s34, 4096
s_mov_b32 s35, 0x20000
s_mov_b32 {sSPIN}, 0
v_and_b32 {vN}, 15, {vL}
v_and_b32 {vU}, 3, {vL}
v_bfe_u32 {vHB}, {vL}, 2, 2
v_mov_b32 {vFF}, 0xff
s_mul_i32 s80, {sW}, 1088
s_add_u32 s80, s80, {LXN}
v_lshl_add_u32 v24, {vL}, 4, s80
s_lshl_b32 s80, {sLO}, 8
s_add_u32 s80, s80, {LXN}
v_mul_u32_u24 v25, 1088, {vHB}
v_and_b32 v7, 1, {vG}
v_lshl_add_u32 v25, v7, 3, v25
v_and_b32 v7, 2, {vG}
v_lshl_add_u32 v25, v7, 5, v25
v_add_u32 v25, s80, v25
v_bfe_u32 v7, v9, 2, 1
v_and_b32 v13, 3, v9
v_lshl_add_u32 v13, v7, 4, v13
v_lshl_add_u32 v13, v13, 10, v10
v_lshl_add_u32 v7, {vG}, 2, {vHB}
v_and_b32 v9, 7, v7
v_lshlrev_b32 v9, 1, v9
v_xor_b32 v9, v9, {vU}
v_lshlrev_b32 v9, 3, v9
v_lshl_add_u32 v9, v7, 7, v9
s_lshl_b32 s80, {sW}, 5
v_xor_b32 v26, s80, v9
v_add_u32 v146, {LF}, v26               ; w1
s_add_u32 s80, {sW4K}, {LWO}
v_add_u32 v148, s80, v9
v_xor_b32 v149, 32, v148
v_xor_b32 v150, 64, v148
v_xor_b32 v151, 0x60, v148
v_lshlrev_b32 v7, 2, {vN}
v_lshl_add_u32 v29, {vG}, 13, v7
v_lshl_add_u32 v30, {vG}, 10, v7
v_lshl_add_u32 v7, {vG}, 8, v7
s_lshl_b32 s80, {sW}, 10
s_add_u32 s80, s80, {LRS}
v_add_u32 v147, s80, v7
v_add_u32 v161, 4096, v147
s_lshl_b32 s84, {sHKV}, 4
s_add_u32 s84, s84, {sLO}
s_lshl_b32 s84, s84, 3
s_add_u32 s84, s84, {sHI}
s_lshl_b32 s84, s84, 2
s_add_u32 s84, s84, {sW}
s_lshl_b32 s84, s84, 6
s_add_u32 s84, s84, {QP}
s_lshl_b32 s85, {sF0}, 1
s_lshr_b32 s80, {sW}, 1
s_add_u32 s85, s85, s80
s_lshl_b32 s85, s85, 5
s_add_u32 s85, s85, {sLO}
s_lshl_b32 s85, s85, 1
s_and_b32 s81, {sW}, 1
s_add_u32 s85, s85, s81
s_lshl_b32 s85, s85, 6
s_add_u32 s85, s85, {HP}
s_mul_i32 s70, s70, 0x01010101
""")
def late_setup():
    A(f"""
v_lshl_add_u32 v7, {vG}, 2, {vHB}
v_and_b32 v9, 7, v7
s_lshl_b32 s80, {sW}, 1
v_xor_b32 v9, s80, v9
v_lshlrev_b32 v9, 5, v9
v_lshl_add_u32 v9, v7, 8, v9
v_lshl_add_u32 v27, {vU}, 3, v9
v_xor_b32 v28, 32, v27
v_lshlrev_b32 v7, 1, {vG}
v_xor_b32 v144, {vN}, v7
v_lshlrev_b32 v144, 4, v144
v_lshl_add_u32 v144, {vG}, 8, v144
v_xor_b32 v145, 0x80, v144
s_lshl4_add_u32 s80, {sW}, {LP}
v_mul_u32_u24 v10, 576, {vG}
v_and_b32 v7, 14, {vN}
v_lshl_add_u32 v10, v7, 5, v10
v_and_b32 v7, 1, {vN}
v_lshl_add_u32 v10, v7, 3, v10
v_add_u32 v10, s80, v10
v_mul_u32_u24 v11, 576, {vHB}
v_lshl_add_u32 v11, {vG}, 4, v11
v_add_u32 v11, {LP}, v11
v_lshlrev_b32 v31, 4, {vN}
v_lshl_add_u32 v31, {vG}, 11, v31
s_lshl_b32 s86, {sHKV}, 2
s_add_u32 s86, s86, {sLO}               ; 4*hkv+lo
s_lshl_b32 s87, s86, 4
s_add_u32 s87, s87, {sW}
s_lshl_b32 s87, s87, 9
s_add_u32 s87, s87, {QP}
s_lshl_b32 s88, s86, 2
s_add_u32 s88, s88, {sW}                ; (4*hkv+h)*4+w
s_lshl_b32 s89, s88, 8
s_add_u32 s89, s89, {sCO}
s_lshl_b32 s89, s89, 7
s_lshl_b32 s88, s88, 12
s_add_u32 s88, s88, {OP}                ; O gather
s_lshl_b32 s90, s90, 12
s_add_u32 s90, s90, {HP}                ; h gather
v_xor_b32 v7, {vG}, {vN}
v_lshlrev_b32 v7, 4, v7
v_lshl_add_u32 v7, {vU}, 10, v7
v_lshl_add_u32 v7, {vHB}, 14, v7
s_add_u32 s80, {sW4K}, {LK}
v_add_u32 v152, s80, v7
v_xor_b32 v153, 64, v152
v_xor_b32 v154, 0x80, v152
v_xor_b32 v155, 0xc0, v152
v_lshrrev_b32 v7, 1, {vG}
v_and_b32 v9, 1, {vG}
v_lshlrev_b32 v7, 7, v7
v_lshl_add_u32 v7, {vN}, 3, v7
v_lshl_add_u32 v7, v9, 2, v7
s_mul_i32 s80, {sW}, 320
s_add_u32 s80, s80, {LQ}
v_add_u32 v156, s80, v7
v_mul_u32_u24 v157, 320, {vHB}
v_lshl_add_u32 v157, {vG}, 4, v157
v_add_u32 v157, {LQ}, v157
v_lshlrev_b32 v8, 4, {vG}
v_add_u32 v8, {LMX}, v8
s_lshl_b32 s80, {sW}, 2
v_add_u32 v9, s80, v8
v_lshlrev_b32 v12, 4, {vU}
v_lshl_add_u32 v12, {vG}, 7, v12
v_lshl_add_u32 v12, {vHB}, 10, v12
v_lshlrev_b32 v158, 3, {vN}
v_lshl_add_u32 v158, {vG}, 14, v158
v_and_b32 v7, 1, {vU}
v_lshl_add_u32 v159, v7, 2, {vG}
v_lshl_add_u32 v159, {vHB}, 3, v159
v_lshlrev_b32 v159, 4, v159
v_mov_b32 v160, 0
s_lshl_b32 s80, {sLO}, 3
s_add_u32 s80, s80, {sHI}               ; 8*b+s
s_lshl_b32 s81, {sHKV}, 2
s_add_u32 s81, s81, {sW}
s_lshl_b32 s81, s81, 5
s_add_u32 s81, s81, s80
s_lshl_b32 s81, s81, 4
s_add_u32 s36, s81, {ST}
s_lshl_b32 s37, {sHKV}, 16
s_add_u32 s37, s37, {sW4K}
s_lshl_b32 s80, s80, 7
s_add_u32 s37, s37, s80
s_add_u32 s37, s37, {OP}                ; O publish
s_lshl_b32 s46, s86, 9
s_add_u32 s46, s46, {ST}
v_lshlrev_b32 v164, 4, {vL}
v_add_u32 v165, {LRS}, v164
v_and_b32 v18, 7, {vN}
v_bfe_u32 v19, {vL}, 3, 1
v_lshl_add_u32 v19, {vG}, 4, v19
v_mul_u32_u24 v19, 6144, v19
v_lshl_add_u32 v166, v18, 4, v19
v_lshl_add_u32 v18, v18, 2, {vG}
v_lshlrev_b32 v167, 1, v18
s_mul_i32 s47, {sCO}, 12288
s_lshl_b32 s80, s86, 7
s_add_u32 s47, s47, s80
s_add_u32 s47, s47, {SP}                ; s publish
s_mul_i32 s40, {sC2}, 12288
s_lshl_b32 s80, {sF1}, 7
s_add_u32 s40, s40, s80
s_add_u32 s40, s40, {SP + 4096}         ; g publish
s_sub_u32 s41, s2, 192
s_mul_i32 s42, s41, 6144
s_add_u32 s42, s42, {SP}
s_add_u32 s43, s42, 4096
s_lshl_b32 s83, s41, 6
v_lshlrev_b32 v7, 4, v7
v_lshrrev_b32 v142, v7, {sE}            ; O tags
v_lshrrev_b32 v143, 8, v142
""")
if not P["LATE"]: late_setup()
def fast_load():
    if P["FAST"] == 1: A("s_load_dwordx8 s[44:51], s[72:73], s92")
def fast_eval():
    if P["FAST"] != 1: return
    for i in range(44, 52, 2): A("s_xor_b64 s[%d:%d], s[%d:%d], s[70:71]" % (i, i + 1, i, i + 1))
    A(f"s_or_b64 s[44:45], s[44:45], s[46:47]\ns_or_b64 s[48:49], s[48:49], s[50:51]\ns_or_b64 s[44:45], s[44:45], s[48:49]\ns_cselect_b32 {sFAST}, 1, 0")
def early_wait(n, lbl):
    opts = sorted(set(a + b for a in (KX, 4) for b in (0, 1)))
    for o in opts[:-1]: A(f"s_cmp_gt_u32 s93, {o}\ns_cbranch_scc1 {lbl}_{o}\ns_waitcnt vmcnt({n + o})\n{lbl}_{o}:")
    A(f"s_waitcnt vmcnt({n + opts[-1]})")
A(f"s_cmp_eq_u32 {sW}, 3\ns_cselect_b32 s93, {1 if P['FAST'] == 1 else 0}, 0")
if W2P: A(f"s_cmp_eq_u32 {sROLE}, 1\ns_cselect_b32 s80, 4, {KX}\ns_add_u32 s93, s80, s93")
else: A(f"s_min_u32 s80, {sROLE}, 1\ns_lshl2_add_u32 s93, s80, s93")
early_wait(4 + HEAD, "L_xw")
stamp("x")
for i in range(4): A("v_lshlrev_b32 v%d, 16, v%d\nv_and_b32 v%d, 0xffff0000, v%d" % (32 + 2 * i, 20 + i, 33 + 2 * i, 20 + i))
A("v_readfirstlane_b32 s80, v32")
for i in range(8): A("v_subrev_f32 v%d, s80, v%d" % (44 + i, 32 + i))
A("v_add_f32 v40, v44, v45\nv_mul_f32 v42, v44, v44\nv_add_f32 v41, v46, v47\nv_mul_f32 v43, v45, v45")
for i in range(2, 8):
    A("v_fmac_f32 v%d, v%d, v%d" % (42 + i % 2, 44 + i, 44 + i))
    if i >= 4: A("v_add_f32 v%d, v%d, v%d" % (40 + i % 2, 40 + i % 2, 44 + i))
A("v_add_f32 v40, v40, v41\nv_add_f32 v42, v42, v43")
for c in ("quad_perm:[1,0,3,2]", "quad_perm:[2,3,0,1]", "row_half_mirror", "row_mirror"):
    for r in (40, 42): A("v_add_f32_dpp v%d, v%d, v%d %s %s" % (r, r, r, c, DPP))
for sw in ("16", "32"):
    A("v_mov_b32 v41, v40\nv_mov_b32 v43, v42\nv_permlane%s_swap_b32 v40, v41\nv_permlane%s_swap_b32 v42, v43\nv_add_f32 v40, v40, v41\nv_add_f32 v42, v42, v43" % (sw, sw))
A("v_mul_f32 v40, 0x3b000000, v40\nv_mul_f32 v42, 0x3b000000, v42\nv_fma_f32 v42, -v40, v40, v42\nv_add_f32 v40, s80, v40\nv_max_f32 v42, 0, v42")
rbf2(40, 42, 40, 42, 41)
A("v_add_f32 v42, 0x3727c5ac, v42"); rbf(42)
A("v_sqrt_f32 v42, v42")
for i in range(8): A("v_sub_f32 v%d, v%d, v40" % (32 + i, 32 + i))
rbf(42)
A("v_rcp_f32 v42, v42")
for i in range(4): rbf2(32 + 2 * i, 33 + 2 * i, 32 + 2 * i, 33 + 2 * i, 44 + i)
for i in range(8): A("v_mul_f32 v%d, v%d, v42" % (32 + i, 32 + i))
for i in range(4): A("v_cvt_pk_bf16_f32 v%d, v%d, v%d" % (44 + i, 32 + 2 * i, 33 + 2 * i))
A("ds_write_b128 v24, v[44:47]")
stamp("ln")
k_role(KS[0], KS[1])
A("s_waitcnt lgkmcnt(0)")
A(f"""s_add_u32 {sE}, {sE}, 0x9d5b3701
s_and_b32 {sT[0]}, {sE}, 0xff
s_bfe_u32 {sT[1]}, {sE}, 0x80008
s_bfe_u32 {sT[2]}, {sE}, 0x80010
s_lshr_b32 {sT[3]}, {sE}, 24
v_lshlrev_b32 v7, 3, {vU}
v_lshrrev_b32 v141, v7, {sE}
""")
early_wait(KS[1], "L_wqw")
A("s_barrier")
stamp("wq")
for t in range(4): A("ds_read2_b64 %s, v25 offset0:%d offset1:%d" % (vr(32 + 4 * t, 4), 2 * t, 2 * t + 16))
def proj(addr, lds, voff, soff, lbl):
    for t in range(4):
        for h in range(2): A("ds_read_b64_tr_b16 %s, %s offset:%d" % (vr(48 + 4 * t + 2 * h, 2), addr, lds + t * 4096 + h * 2048))
    for t in range(4):
        A("s_waitcnt lgkmcnt(%d)" % (6 - 2 * t)); mfma(64, 48 + 4 * t, 32 + 4 * t, "0" if t == 0 else None)
    A(f"v_bfi_b32 {lbl}, {vFF}, v141, v64\nbuffer_store_dword {lbl}, {voff}, {WS}, {soff} offen" + ("" if P["FAST"] else " sc1"))
proj("v26", LWQ, "v29", "s84", "v190")
stamp("qpub")

if P["TK"]:
    A(f"s_and_b32 s44, {sE}, 0xffffff00\ns_lshl_b32 s45, {sCO}, 1\ns_add_u32 s45, s45, {sW}\ns_lshl_b32 s45, s45, 7\ns_add_u32 s45, s45, {TKB - 256}")
    A(f"s_lshl_b32 s80, s2, 2\ns_add_u32 s80, s80, {sW}\ns_cmp_eq_u32 s80, 1021\ns_cbranch_scc0 L_notk\nv_mov_b32 v69, s44\nv_lshlrev_b32 v70, 7, {vL}\ns_mov_b64 exec, 0xffff")
    A(f"buffer_store_dword v69, v70, {WS}, 0 offen offset:{TKB} sc1\ns_mov_b64 exec, -1\nL_notk:")
k_role(KS[1], KS[2])
if P["LATE"]: late_setup()
if W2P: A(f"s_cmp_eq_u32 {sROLE}, 1\ns_cbranch_scc0 L_now1w")
A("s_waitcnt vmcnt(%d)\nL_now1w:\ns_barrier" % (KS[2] - 3))
A(f"s_cmp_eq_u32 {sROLE}, 1\ns_cbranch_scc0 L_noh")
proj("v146", 0, "v30", "s85", "v191")
A("L_noh:")
stamp("hpub")
if P["XL"]: A("ds_write_b128 v24, v[20:23]")
def qgather(r=32):
    for i in range(2): A(f"buffer_load_dwordx4 {vr(r + 4 * i, 4)}, v31, {WS}, s87 offen offset:{256 * i} {PLD}")
def hgather():
    for i in range(2): A(f"buffer_load_dwordx4 {vr(132 + 4 * i, 4)}, v12, {WS}, s90 offen offset:{64 * i} {PLD}")
k_role(KS[2], 16)
seq = []
Q2 = P["QG2"]
for a in range(3):
    if a == NV0:
        if P["FAST"] == 1: A(f"v_and_b32 v19, 28, {vL}\nv_add_u32 v19, s92, v19\nglobal_load_dword v18, v19, s[72:73] sc1")
        qgather(); seq += ["q1"] * 2
        stamp("qg_iss")
    if Q2 and a == NV0 + Q2: qgather(40); seq += ["q2"] * 2
    if a + 1 == P["PRE"]:
        A(f"buffer_load_dword v189, v158, {WS}, s37 offen\nbuffer_load_dword v189, v160, {WS}, s36 offen"); seq += ["p"] * 2
    if a == 2 and not W2P: hgather(); seq += ["h"] * 2
    kv_dma(V, VO, LV, a); seq += ["v"] * 4
V3E = P["V3E"]
if V3E: kv_dma(V, VO, LV, 3); seq += ["v"] * 4
stamp("v2_iss")
A("s_waitcnt vmcnt(%d)" % seq[::-1].index("q1"))
for a in range(3):
    for j in range(4): A("ds_read_b128 %s, v%d offset:%d" % (vr(64 + 16 * a + 4 * j, 4), 152 + j, 256 * a))
if P["FAST"] == 1: A(f"v_cmp_ne_u32 vcc, s70, v18\ns_cmp_lg_u64 vcc, 0\ns_cselect_b32 {sFAST}, 1, 0")
if P["FAST"] == 1:
    A(f"s_cbranch_scc0 L_norep\nbuffer_store_dword v190, v29, {WS}, s84 offen sc1\ns_cmp_eq_u32 {sROLE}, 1\ns_cbranch_scc0 L_norep\nbuffer_store_dword v191, v30, {WS}, s85 offen sc1\nL_norep:")
if Q2:
    untag(32, 8, 48)
    A("s_cbranch_vccz L_qok\ns_mov_b64 exec, vcc\ns_waitcnt vmcnt(%d)" % seq[::-1].index("q2"))
    for e in range(8): A("v_mov_b32 v%d, v%d" % (32 + e, 40 + e))
A("s_branch L_qchk\nL_qagain:")
qgather()
A("s_waitcnt vmcnt(0)\nL_qchk:")
untag(32, 8, 48)
retry("L_qagain", "L_qok")
stamp("q_ok")
rscatter8(32)
A("v_cvt_pk_bf16_f32 v32, v32, v33\nds_write_b32 v156, v32\ns_waitcnt lgkmcnt(0)\ns_barrier")
QB = 168
for j in range(4): A("ds_read_b128 %s, v157 offset:%d" % (vr(QB + 4 * j, 4), 64 * j))
for j in range(4): A("ds_read_b128 %s, v%d offset:%d" % (vr(112 + 4 * j, 4) if j < 3 else "v[128:131]", 152 + j, 256 * 3))
for j in range(4):
    A("s_waitcnt lgkmcnt(%d)" % (7 - j))
    for a in range(3): mfma(48 + 4 * a, 64 + 16 * a + 4 * j, QB + 4 * j, "0" if j == 0 else None)
A("s_waitcnt lgkmcnt(0)")
for j in range(4): mfma(60, 112 + 4 * j if j < 3 else 128, QB + 4 * j, "0" if j == 0 else None)
stamp("qk")
F2 = P["F2"] and P["FAST"] == 1 and not V3E
if F2: A("global_load_dword v18, v19, s[72:73] sc1")
if not V3E: kv_dma(V, VO, LV, 3)
stamp("v3_iss")
SWP = P["SWP"]
def wo_tile(): tile_dma(WO, "v13", "s89", 1024, LWO, (0, 8, 4, 12))
def wo_dma(pos):
    if P["WOP"] != pos: return
    if SWP: A(f"s_cmp_eq_u32 {sROLE}, 2\ns_cbranch_scc0 L_sw1"); hgather(); w2_dma(); A("s_branch L_sw2\nL_sw1:")
    wo_tile(); A("L_sw2:")
wo_dma(0)
rbf2(48, 49, 48, 52, 53); rbf2(50, 51, 56, 60, 54)
for e in range(4): A("v_mul_f32 v%d, 0x3db504f3, v%d" % (48 + e, 48 + e))
rbf2(48, 49, 48, 49, 52); rbf2(50, 51, 50, 51, 53)
A("v_max_f32 v52, v48, v49\nv_max3_f32 v52, v52, v50, v51")
ROW = ("quad_perm:[1,0,3,2]", "quad_perm:[2,3,0,1]", "row_half_mirror", "row_mirror")
for c in ROW: A("v_max_f32_dpp v52, v52, v52 %s %s" % (c, DPP))
A("ds_write_b32 v9, v52\ns_mov_b32 s80, 0x3fb8aa3b\ns_waitcnt lgkmcnt(0)\ns_barrier\nds_read_b128 v[52:55], v8\ns_waitcnt lgkmcnt(0)")
A("v_max_f32 v52, v52, v53\nv_max3_f32 v56, v52, v54, v55\nv_mul_f32 v52, 0xbfb8aa3b, v56")
for e in range(4): A("v_fma_f32 v%d, v%d, s80, v52" % (48 + e, 48 + e))
for e in range(4): A("v_exp_f32 v%d, v%d" % (48 + e, 48 + e))
A("v_add_f32 v52, v48, v49\nv_cvt_pk_bf16_f32 v54, v48, v49\nv_add_f32 v53, v50, v51\nv_cvt_pk_bf16_f32 v55, v50, v51\nv_add_f32 v52, v52, v53\nds_write_b64 v10, v[54:55]")
for c in ROW: A("v_add_f32_dpp v52, v52, v52 %s %s" % (c, DPP))
A("ds_write_b32 v9, v52 offset:64")
wo_dma(1)
stamp("p_done")
def wreads(r, off):
    for mt in range(4):
        for h in range(2): A("ds_read_b64_tr_b16 %s, v%d offset:%d" % (vr(r + 4 * mt + 2 * h, 2), 148 + mt, off + h * 2048))
def wstage(a, b, addr):
    for mt in range(4): mfma(32 + 4 * mt, a + 4 * mt, b, "0")
    for mt in (0, 2): A("ds_write2_b32 %s, v%d, v%d offset0:%d offset1:%d" % (addr, 32 + 4 * mt, 36 + 4 * mt, 16 * mt, 16 * mt + 16))
def ffn_b(n=None):
    A(f"s_cmp_eq_u32 {sROLE}, 2\ns_cbranch_scc0 L_noffn")
    if n: A("s_waitcnt vmcnt(%d)" % n)
    wreads(80, LF - LWO)
    if not W2P: A("s_waitcnt vmcnt(%d)" % (8 if P["WOP"] == 2 else 12))
    A("s_branch L_hchk\nL_hagain:")
    hgather()
    A("s_waitcnt vmcnt(0)\nL_hchk:")
    untag(132, 8, 140)
    retry("L_hagain", "L_hok")
    rscatter8(132)
    A("v_max_f32 v132, 0, v132\nv_max_f32 v133, 0, v133\nv_cvt_pk_bf16_f32 v132, v132, v133")
    quad_b(136, 132)
    A("s_waitcnt lgkmcnt(0)")
    wstage(80, 136, "v161")
    A("L_noffn:")
def w2_late(pos):
    if W2P == pos:
        A(f"s_cmp_eq_u32 {sROLE}, 2\ns_cbranch_scc0 L_now2l")
        if SWP: wo_tile()
        else: hgather(); w2_dma()
        A("L_now2l:")
def r2_wait(n, lbl, on, tail=""):
    if on: role_wait(n, on, lbl, f"eq_u32 {sROLE}, 2", tail)
    else: A(f"s_waitcnt vmcnt({n}) {tail}")
if not W2P: ffn_b()
w2_late(1)
stamp("ffn")
wo_dma(2)
r2_wait(8, "L_w012", 6 if W2P == 1 else 2 * SWP, "lgkmcnt(0)"); A("s_barrier")
stamp("v012")
A("ds_read_b128 v[60:63], v8 offset:64")
def vreads(t, r):
    A("ds_read_b128 %s, v11 offset:%d" % (vr(64 + 4 * t, 4), 64 * t))
    vreads2(t, r)
def vreads2(t, r):
    for mt in range(2):
        for h in range(2): A("ds_read_b64_tr_b16 %s, v%d offset:%d" % (vr(r + 4 * mt + 2 * h, 2), 27 + mt, t * 8192 + h * 4096))
R3 = (96, 104, 112)
vreads(0, 96); vreads(1, 104)
A(f"v_mov_b32 v58, {sE}\nv_mov_b32 v59, {sE}\ns_lshl_b32 s80, {sW}, 4\ns_waitcnt lgkmcnt(10)")
if STAMP: A(f"v_writelane_b32 v127, {sFAST}, 57")
if F2: A(f"v_cmp_ne_u32 vcc, s70, v18\ns_cmp_lg_u64 vcc, 0\ns_cselect_b32 {sFAST}, 1, 0")
A("v_add_f32 v60, v60, v61\nv_add_f32 v62, v62, v63")
vreads(2, 112)
A("v_add_f32 v57, v60, v62\ns_lshl_b64 exec, 1, s80")
gstore(f"buffer_store_dwordx4 v[56:59], v160, {WS}, s36 offen", "L_ss")
A("s_mov_b64 exec, -1")
w2_late(2)
for t in range(6):
    A("s_waitcnt lgkmcnt(%d)" % (10 if t < 4 else (7, 2)[t - 4]))
    for mt in range(2): mfma(40 + 4 * mt, R3[t % 3] + 4 * mt, 64 + 4 * t, "0" if t == 0 else None)
    if t + 3 < 6: vreads(t + 3, R3[t % 3])
    if t == 3: A("ds_read_b128 v[88:91], v11 offset:384\nds_read_b128 v[92:95], v11 offset:448")
def sgather(r=184): A(f"buffer_load_dwordx4 {vr(r, 4)}, v159, {WS}, s46 offen {PLD}")
def reduce_pub(d, addr, off, soff):
    for i in range(4): A("ds_read_b128 %s, %s offset:%d" % (vr(d + 4 * i, 4), addr, off + 1024 * i))
    A("s_waitcnt lgkmcnt(2)")
    for e in range(0, 4, 2): A("v_pk_add_f32 %s, %s, %s" % (vr(d + e, 2), vr(d + e, 2), vr(d + 4 + e, 2)))
    A("s_waitcnt lgkmcnt(0)")
    for e in range(0, 4, 2): A("v_pk_add_f32 %s, %s, %s" % (vr(d + 8 + e, 2), vr(d + 8 + e, 2), vr(d + 12 + e, 2)))
    for e in range(0, 4, 2): A("v_pk_add_f32 %s, %s, %s" % (vr(d + e, 2), vr(d + e, 2), vr(d + 8 + e, 2)))
    tag(d)
    A(f"buffer_store_dwordx4 {vr(d, 4)}, v166, {WS}, {soff} offen {PST}")
w2_late(3)
sgather()
if P["GE"]:
    A(f"s_lshl_b32 s80, {sW}, 2\ns_add_u32 s80, s80, {sROLE}\ns_cmp_eq_u32 s80, 6\ns_cbranch_scc0 L_nog")
    reduce_pub(168, "v165", 4096, "s40")
    A("s_waitcnt vmcnt(7)\ns_branch L_gdone\nL_nog:")
stamp("pv1")
r2_wait(6, "L_w3", 6 if W2P else 0); A("L_gdone:\ns_barrier")
stamp("v3")
vreads2(6, 96); vreads2(7, 104)
for t in (6, 7):
    A("s_waitcnt lgkmcnt(%d)" % (4 * (7 - t)))
    for mt in range(2): mfma(40 + 4 * mt, R3[t - 6] + 4 * mt, 64 + 4 * t)
A(f"v_bfi_b32 v48, {vFF}, v142, v40\nv_bfi_b32 v49, {vFF}, v143, v44")
gstore(f"buffer_store_dwordx2 v[48:49], v158, {WS}, s37 offen", "L_os")
stamp("o_pub")
def ogather():
    for sh in range(2):
        for i in range(2): A(f"buffer_load_dwordx4 {vr(64 + 8 * sh + 4 * i, 4)}, v12, {WS}, s88 offen offset:{512 * sh + 64 * i} {PLD}")
SCHK = f"v_bitop3_b32 v186, v186, v187, {sE} bitop3:0x7e\nv_cmp_ne_u32 vcc, 0, v186"
if SWP and P["FB"]: ffn_b(7)
if P["SG2"]:
    sgather(56); ogather()
    if SWP and not P["FB"]: ffn_b(12)
    A("s_waitcnt vmcnt(6)")
    stamp("wo_land")
    if W2P and not SWP: ffn_b()
    A(SCHK)
    wreads(96, 0)
    A("s_cbranch_vccz L_sok2\ns_mov_b64 exec, vcc\ns_waitcnt vmcnt(4)")
    for e in range(4): A("v_mov_b32 v%d, v%d" % (184 + e, 56 + e))
    A(SCHK + "\ns_cbranch_vccz L_sok1\ns_mov_b64 exec, vcc\nL_sagain:")
    sgather()
    A("s_waitcnt vmcnt(0)\n" + SCHK)
    retry("L_sagain", "L_sok")
    ogather()
    A("L_sok1:\ns_mov_b64 exec, -1\nL_sok2:")
else:
    ogather()
    if SWP and not P["FB"]: ffn_b(11)
    A("s_waitcnt vmcnt(5)")
    stamp("wo_land")
    if W2P and not SWP: ffn_b()
    wreads(96, 0)
    A("s_branch L_schk\nL_sagain:")
    sgather()
    A("s_waitcnt vmcnt(0)\nL_schk:\n" + SCHK)
    retry("L_sagain", "L_sok")
A(f"v_max_f32_dpp v60, v184, v184 quad_perm:[1,0,3,2] {DPP}")
allred_g("v_max_f32", 60, 61)
A("v_sub_f32 v60, v184, v60\nv_mul_f32 v60, 0x3fb8aa3b, v60\nv_exp_f32 v60, v60\nv_mul_f32 v61, v60, v185")
A(f"v_add_f32_dpp v61, v61, v61 quad_perm:[1,0,3,2] {DPP}")
allred_g("v_add_f32", 61, 62)
A("v_rcp_f32 v61, v61\nv_mul_f32 v60, v60, v61")
A(f"v_mov_b32_dpp v62, v60 quad_perm:[0,0,0,0] {DPP}\nv_mov_b32_dpp v63, v60 quad_perm:[1,1,1,1] {DPP}")
stamp("st_ok")
A("s_branch L_ow\nL_oagain:")
ogather()
A("L_ow:\ns_waitcnt vmcnt(0)")
untag(64, 16, 61)
retry("L_oagain", "L_ook")
stamp("o_ok")
def ticket():
    A(f"v_mov_b32 v60, 1\ns_mov_b64 exec, 1\nbuffer_atomic_add v60, v160, {WS}, s45 offen sc0 sc1\ns_mov_b64 exec, -1")
if P["TK"] == 3:
    A(f"s_cmp_ge_u32 {sW}, 2\ns_cbranch_scc0 L_tk3"); ticket(); A("L_tk3:")
for e in range(0, 8, 2): A("v_pk_mul_f32 %s, %s, v[62:63] op_sel_hi:[1,0]" % (vr(64 + e, 2), vr(64 + e, 2)))
for e in range(0, 8, 2): A("v_pk_fma_f32 %s, %s, v[62:63], %s op_sel:[0,1,0]" % (vr(64 + e, 2), vr(72 + e, 2), vr(64 + e, 2)))
rscatter8(64, True)
A("v_cvt_pk_bf16_f32 v64, v64, v65")
quad_b(68, 64)
A("s_waitcnt lgkmcnt(0)")
wstage(96, 68, "v147")
if not P["GE"]: A(f"v_add_u32 v165, {sW4K}, v165\ns_cmp_eq_u32 {sW}, 0\ns_cselect_b32 s47, s47, s40")
if P["TK"] == 2:
    A(f"s_cmp_ge_u32 {sW}, 2\ns_cbranch_scc0 L_tk2"); ticket(); A("L_tk2:")
A(f"s_cmp_ge_u32 {sW}, 2\ns_waitcnt lgkmcnt(0)\ns_barrier\ns_cbranch_scc1 L_final")
if P["GE"]: A(f"s_cmp_eq_u32 {sW}, 0\ns_cbranch_scc0 L_done")
else: A(f"s_lshl_b32 s80, {sW}, 1\ns_andn2_b32 s80, s80, {sROLE}\ns_cbranch_scc1 L_done")
reduce_pub(32, "v165", 0, "s47")
stamp("s_pub")
A("s_branch L_done")
A("L_final:")
if P["TK"]:
    if P["TK"] >= 2: A("s_branch L_tkw")
    A("L_tkagain:"); ticket()
    A(f"""L_tkw:
s_waitcnt vmcnt(0)
v_readfirstlane_b32 s41, v60
s_xor_b32 s41, s41, s44
s_cmp_lt_u32 s41, 32
s_cbranch_scc1 L_tkok
s_add_u32 {sSPIN}, {sSPIN}, 1
s_cmp_lt_u32 {sSPIN}, {P["SPIN"]}
s_cbranch_scc1 L_tkagain
s_branch L_done
L_tkok:
s_sub_u32 s41, s41, 28
s_cbranch_scc1 L_done
s_lshl_b32 s41, s41, 4
s_bfe_u32 s80, s45, 0x40007
s_add_u32 s41, s41, s80
s_mul_i32 s42, s41, 6144
s_add_u32 s42, s42, {SP}
s_add_u32 s43, s42, 4096
s_lshl_b32 s83, s41, 6""")
    stamp("tk")
    if STAMP: A(f"s_mov_b32 {sSPIN}, 100")
else: A(f"s_cmp_eq_u32 {sW}, 2\ns_cbranch_scc0 L_done\ns_cmp_lt_u32 s41, 64\ns_cbranch_scc0 L_done")
if P["XL"]: A(f"s_lshr_b32 s80, s41, 4\ns_lshl_b32 s80, s80, 6\ns_add_u32 s80, s80, s83\ns_add_u32 s80, s80, {LXN}\nv_add_u32 v62, s80, v167")
else: A(f"buffer_load_ushort v60, v167, {X}, s83 offen")
def pka(d, a, b, n):
    for e in range(0, n, 2): A("v_pk_add_f32 %s, %s, %s" % (vr(d + e, 2), vr(a + e, 2), vr(b + e, 2)))
def ggather(l):
    A(f"buffer_load_dwordx4 v[48:51], v164, {WS}, s43 offen {PLD}")
    for e in range(4): A("v_mov_b32 v%d, %s" % (52 + e, sT[e]))
    A(f"s_mov_b32 s80, exec_hi\ns_and_b32 exec_hi, exec_hi, 0xffff\ns_cbranch_execz {l}\nbuffer_load_dwordx4 v[52:55], v164, {WS}, s43 offen offset:1024 {PLD}\n{l}:\ns_mov_b32 exec_hi, s80")
def fgather():
    for i in range(4): A(f"buffer_load_dwordx4 {vr(32 + 4 * i, 4)}, v164, {WS}, s42 offen offset:{1024 * i} {PLD}")
def red8(r):
    for e in range(2): A("v_permlane32_swap_b32 v%d, v%d" % (r + e, r + 2 + e))
    pka(r, r, r + 2, 2)
    A("v_permlane16_swap_b32 v%d, v%d\nv_add_f32 v%d, v%d, v%d\nv_add_f32_dpp v%d, v%d, v%d row_ror:8 %s" % (r, r + 1, r, r, r + 1, r, r, r, DPP))
    rbf(r)
ggather("L_gs1")
if P["FIN"] == 2: A("s_waitcnt vmcnt(0)")
fgather()
if P["XL"]: A("ds_read_u16 v60, v62")
A("s_waitcnt vmcnt(4) lgkmcnt(0)\ns_branch L_gchk\nL_gagain:")
ggather("L_gs2")
A("s_waitcnt vmcnt(0)\nL_gchk:")
untag(48, 8, 61)
retry("L_gagain", "L_gok")
pka(48, 48, 52, 4)
A("v_lshlrev_b32 v60, 16, v60")
red8(48)
A("v_mul_f32 v49, 0xbfb8aa3b, v48\nv_exp_f32 v49, v49\nv_add_f32 v49, 1.0, v49\nv_rcp_f32 v49, v49\nv_mul_f32 v48, v48, v49")
rbf(48)
A("s_branch L_fchk\nL_fagain:")
fgather()
A("L_fchk:\ns_waitcnt vmcnt(0)")
untag(32, 16, 61)
retry("L_fagain", "L_fok")
stamp("f_ok")
pka(32, 32, 40, 8); pka(32, 32, 36, 4)
red8(32)
A("v_mul_f32 v32, v32, v48"); rbf(32)
A("v_add_f32 v32, v60, v32\nv_cvt_pk_bf16_f32 v32, v32, v32")
A(f"s_mov_b32 exec_lo, 0x00ff00ff\ns_mov_b32 exec_hi, 0x00ff00ff\nbuffer_store_short v32, v167, {OUT}, s83 offen")
A(f"s_cmp_eq_u32 s41, 0\ns_cbranch_scc0 L_done\nv_mov_b32 v33, {sE}\ns_mov_b64 exec, 1\nbuffer_store_dword v33, v160, {WS}, 0 offen")
A("L_done:")
if P["DIAG"]:
    stamp("end")
    A("s_sub_u32 s94, s94, s96\ns_lshl_b32 s94, s94, 2\ns_add_u32 s94, s94, 4000\nL_diag:\ns_memrealtime s[98:99]\ns_waitcnt lgkmcnt(0)\ns_sub_u32 s98, s98, s96\ns_cmp_lt_u32 s98, s94\ns_cbranch_scc1 L_diag")
if STAMP:
    A("s_mov_b64 exec, -1")
    stamp("end")
    A(f"v_writelane_b32 v127, {sSPIN}, 61\nv_writelane_b32 v127, {sFAST}, 59")
    A(f"s_lshl_b32 s80, s2, 10\ns_add_u32 s80, s80, {STP}\nv_lshlrev_b32 v7, 2, v0\nbuffer_store_dword v127, v7, {WS}, s80 offen")
A("L_end:\ns_endpgm\n.fill 8448 - (. - %s), 1, 0" % KN if not STAMP else "L_end:\ns_endpgm\n.fill 2048, 1, 0")
hdr = open("recurrent_scan__sliding_block_cached__dense_activation_relu__decode.s.ref").read().split("; Override launch")[0]
print(hdr + "; @launch grid=(256,1,1) block=(256,1,1) lds=%d" % LDS_BYTES)
print('.amdgcn_target "amdgcn-amd-amdhsa--gfx950"\n.text\n.globl %s\n.p2align 8\n.type %s,@function\n%s:' % (KN, KN, KN))
print(A.text())
print('.section .rodata,"a"\n.p2align 6\n.amdhsa_kernel %s\n  .amdhsa_next_free_vgpr 192\n  .amdhsa_next_free_sgpr 102\n  .amdhsa_accum_offset 192\n  .amdhsa_group_segment_fixed_size 0\n  .amdhsa_kernarg_size 88\n  .amdhsa_user_sgpr_count 2\n  .amdhsa_user_sgpr_kernarg_segment_ptr 1\n  .amdhsa_system_sgpr_workgroup_id_x 1\n.end_amdhsa_kernel' % KN)
```

```python
import sys
from asmlib import Asm
KN = "recurrent_scan__sliding_block_cached__dense_activation_relu__decode_kernel"
P = dict(DG=-1, THR=0, VQ=3, W2P=1, F2=1, NF=7, FB=1, SWP=1, RS=1, KX=4, STS="", WOP=1, ROT=20992, FAST=1, X1=2, XO=2, XL=1, SG2=1, FIN=1, TLB=0, FLP=2, V3E=0, LATE=1, PRE=0, TK=1, GE=1, QG2=2, KS="4+6+10", NK0=2, NV0=0, PKV="nt", PW="nt", STAMP=0, SPIN=200000, WARM=2, QX=0, PSTG="sc1", FINE=0, SLEEP=0, PST="sc1", PLD="sc1", K2E=1, DIAG="")
for a in sys.argv[1:]:
    k, v = a.split("=")
    P[k] = type(P[k])(v) if v != "def" else ""
if P["W2P"]: P["GE"] = 0
PSTG = P["PSTG"]
PST, PLD = P["PST"].replace("_", " "), P["PLD"].replace("_", " ")
NK0, NV0, PKV, PW, STAMP = P["NK0"], P["NV0"], P["PKV"], P["PW"], P["STAMP"]
LV, LK, LF, LS = 0, 65536, 131072, 147456
LWQ, LWO = LV, LK + 49152
LXN = LS; LQ = LXN + 4352; LMX = LQ + 1280; LL = LMX + 64; LP = LL + 64; LRS = LP + 2304 + 128; LRG = LRS + 4096
LDS_BYTES = LRG + 4096
assert LRS % 256 == 0 and LDS_BYTES <= 163840
QP, HP, ST, OP, SP, WSZ = 0x1000, 0x41000, 0x79000, 0x80000, 0x100000, 0x160000
STP = 0x200000
TKB = 0x800
DPP = "row_mask:0xf bank_mask:0xf"
A = Asm()
nst = [0]
def stamp(name):
    if P["DIAG"] == name: A("s_memrealtime s[94:95]\ns_waitcnt lgkmcnt(0)")
    if not STAMP or (P["STS"] and name not in P["STS"].split("+")): return
    i = nst[0]; nst[0] += 1
    A("s_memrealtime s[98:99]\ns_waitcnt lgkmcnt(0)\nv_writelane_b32 v127, s98, %d ; stamp %s" % (i, name))
    print("stamp", i, name, file=sys.stderr)
X, WQ, K, V, WO, WF, WS, OUT = ("s[%d:%d]" % (i, i + 3) for i in range(4, 36, 4))
sW, sHKV, sLO, sHI, sROLE, sE = "s52", "s53", "s55", "s56", "s57", "s60"
sT = ["s61", "s62", "s63", "s64"]
sKV, sW4K = "s58", "s59"
sM0, sM1, sM2, sM3, sM01 = "s[66:67]", "s[68:69]", "s[70:71]", "s[72:73]", "s[74:75]"
sF0, sF1 = "s76", "s77"
sSPIN = "s78"
sKS, sCO, sC2 = "s66", "s67", "s68"
vL, vN, vG, vU, vHB, vFF = "v1", "v2", "v3", "v4", "v5", "v6"
def vr(a, n): return "v[%d:%d]" % (a, a + n - 1)

thr = [0]
def tile_dma(srd, voff, sbase, pitch, lds, rows=(0, 8, 16, 24)):
    A("s_add_u32 m0, %s, %d" % (sW4K, lds))
    for i in range(4):
        if i: A("s_add_i32 %s, %s, %d" % (sbase, sbase, (rows[i] - rows[i - 1]) * pitch - 1024))
        A("buffer_load_dwordx4 %s, %s, %s offen offset:%d %s lds" % (voff, srd, sbase, 1024 * i, PW))
def kv_dma(srd, voffs, lds, a, i0=0, i1=4):
    if i0 == i1: return
    if srd == K:
        if i0 == 0:
            d = a ^ (a - 1)
            for v in voffs: A("v_xor_b32 %s, %d, %s" % (v, d << 14 | d << 6, v))
        A("s_add_u32 m0, %s, %d" % (sW4K, lds + a * 16384))
        for i in range(i0, i1):
            if thr[0]: A("s_waitcnt vmcnt(%d)" % (thr[0] - 1))
            A("global_load_lds_dwordx4 %s, s[38:39] offset:%d %s" % (voffs[i], 1024 * i, PKV))
        return
    A("s_add_u32 m0, %s, %d\ns_xor_b32 s79, %s, %d" % (sW4K, lds + a * 16384, sKV, a * 16384))
    for i in range(i0, i1):
        if thr[0]: A("s_waitcnt vmcnt(%d)" % (thr[0] - 1))
        A("buffer_load_dwordx4 %s, %s, s79 offen offset:%d %s lds" % (voffs[i % len(voffs)], srd, 1024 * i, PKV))
def tag(r):
    for e in range(4): A("v_bfi_b32 v%d, %s, %s, v%d" % (r + e, vFF, sT[e], r + e))
def untag(r, n, t):
    for e in range(n): A("v_xor_b32 v%d, %s, v%d" % (r + e, sT[e % 4], r + e))
    A("v_or3_b32 v%d, v%d, v%d, v%d" % (t, r, r + 1, r + 2))
    i = 3
    while i + 1 < n:
        A("v_or3_b32 v%d, v%d, v%d, v%d" % (t, t, r + i, r + i + 1)); i += 2
    A("v_bitop3_b32 v%d, v%d, v%d, %s bitop3:0xa8" % (t, t, r + i, vFF))
    A("v_cmp_ne_u32 vcc, 0, v%d" % t)
def retry(lbl_again, lbl_ok):
    A("s_cbranch_vccz %s\ns_mov_b64 exec, vcc\n" % lbl_ok + ("s_sleep %d\n" % P["SLEEP"] if P["SLEEP"] else "") + "s_add_u32 %s, %s, 1\ns_cmp_lt_u32 %s, %d\ns_cbranch_scc1 %s\n%s:" % (sSPIN, sSPIN, sSPIN, P["SPIN"], lbl_again, lbl_ok))
    A("s_mov_b64 exec, -1")
def rscatter8(r, alt=False):
    for e in range(4): A("v_permlane32_swap_b32 v%d, v%d" % (r + e, r + 4 + e))
    for e in range(0, 4, 2): A("v_pk_add_f32 %s, %s, %s" % (vr(r + e, 2), vr(r + e, 2), vr(r + 4 + e, 2)))
    pr = ((0, 1), (2, 3)) if alt else ((0, 2), (1, 3))
    for a, b in pr: A("v_permlane16_swap_b32 v%d, v%d" % (r + a, r + b))
    for e, (a, b) in enumerate(pr): A("v_add_f32 v%d, v%d, v%d" % (r + e, r + a, r + b))
def allred_g(op, r, t):
    A("v_mov_b32 v%d, v%d\nv_permlane16_swap_b32 v%d, v%d\n%s v%d, v%d, v%d" % (t, r, r, t, op, r, r, t))
    A("v_mov_b32 v%d, v%d\nv_permlane32_swap_b32 v%d, v%d\n%s v%d, v%d, v%d" % (t, r, r, t, op, r, r, t))
def allred64(r, t):
    for c in ("quad_perm:[1,0,3,2]", "quad_perm:[2,3,0,1]", "row_half_mirror", "row_mirror"):
        A("v_add_f32_dpp v%d, v%d, v%d %s %s" % (r, r, r, c, DPP))
    allred_g("v_add_f32", r, t)
def rbf(r):
    A("v_cvt_pk_bf16_f32 v%d, v%d, v%d\nv_and_b32 v%d, 0xffff0000, v%d" % (r, r, r, r, r))
def rbf2(d0, d1, a, b, t):
    A("v_cvt_pk_bf16_f32 v%d, v%d, v%d\nv_lshlrev_b32 v%d, 16, v%d\nv_and_b32 v%d, 0xffff0000, v%d" % (t, a, b, d0, t, d1, t))
def quad_b(dst, src):
    for i, r in enumerate((0, 1, 2, 3)):
        A("v_mov_b32_dpp v%d, v%d quad_perm:[%d,%d,%d,%d] %s" % (dst + i, src, r, r, r, r, DPP))
def mfma(d, a, b, c=None):
    A("v_mfma_f32_16x16x32_bf16 %s, %s, %s, %s" % (vr(d, 4), vr(b, 4), vr(a, 4), vr(d, 4) if c is None else c))

sFAST = "s69"
def gstore(ins, lbl):
    if P["FAST"] == 0: A(ins + " sc1"); return
    if P["FAST"] == 2: A(ins); return
    A(f"s_cmp_eq_u32 {sFAST}, 0\ns_cbranch_scc1 {lbl}_f\n{ins} sc1\ns_branch {lbl}_e\n{lbl}_f:\n{ins}\n{lbl}_e:")
def role_wait(n, extra, lbl, role, tail=""):
    A(f"s_cmp_{role}\ns_cbranch_scc1 {lbl}\ns_waitcnt vmcnt({n})\n{lbl}:\ns_waitcnt vmcnt({n + extra}) {tail}")
KO = ["v14", "v15", "v16", "v17"]; VO = ["v144", "v145"]
KS = [int(x) for x in P["KS"].split("+")] + [16]
HEAD = KS[0]
def k_issue(p0, p1):
    while p0 < p1:
        a = p0 // 4; e = min(p1, 4 * a + 4)
        kv_dma(K, KO, LK, a, p0 - 4 * a, e - 4 * a); p0 = e
nk = [0]
assert KS[2] + P["KX"] <= 16
W2P = P["W2P"]; KX = P["KX"] if W2P else 0
def k_role(p0, p1):
    if not KX: k_issue(p0, p1); return
    nk[0] += 1; l = "L_k%d" % nk[0]
    A(f"s_cmp_eq_u32 {sROLE}, 1\ns_cbranch_scc1 {l}a"); k_issue(min(p0 + KX, 16), min(p1 + KX, 16))
    A(f"s_branch {l}b\n{l}a:"); k_issue(p0, p1); A(f"{l}b:")
if STAMP or P["DIAG"]: A("s_memrealtime s[96:97]")
A(f"""
s_load_dwordx16 s[36:51], s[0:1], 0
s_load_dwordx4 s[72:75], s[0:1], 72
s_getpc_b64 s[80:81]
v_mad_u64_u32 v[162:163], vcc, v0, 32, s[80:81]
s_cmpk_ge_u32 s2, 256
s_cbranch_scc1 L_end
global_load_dword v162, v[162:163], off
v_readfirstlane_b32 {sW}, v0
v_lshrrev_b32 v9, 3, v0
v_lshlrev_b32 v8, 4, v0                 ; x offset
v_bitop3_b32 v10, v9, v0, 7 bitop3:0x28
s_and_b32 {sHKV}, s2, 7
s_lshr_b32 {sHI}, s2, 5
s_lshl3_add_u32 s81, {sHKV}, {sHI}
s_and_b32 s80, s2, 24
s_lshl_b32 s80, s80, 10
s_add_u32 s81, s81, s80
s_lshl_b32 s81, s81, 7
v_lshl_add_u32 v11, v9, 9, v10
s_bfm_b32 s82, 8, 10
v_lshl_add_u32 v11, v11, 4, s81
s_lshl_b32 m0, {sW}, 6
v_add_u32 v12, s82, v11
v_add_u32 v13, s82, v12
v_add_u32 v18, s82, v13
s_and_b32 {sKV}, s2, 31
s_lshl_b32 {sKV}, {sKV}, 5
s_add_u32 {sKV}, {sKV}, {sHI}
s_addk_i32 {sKV}, 24
s_lshl_b32 {sKV}, {sKV}, 16
s_lshl1_add_u32 {sKV}, s80, {sKV}
s_movk_i32 s82, 3072
v_add_u32 v14, {sKV}, v8
v_xad_u32 v15, v14, 16, s82
v_xad_u32 v16, v15, 48, s82
s_waitcnt lgkmcnt(0)
global_load_dwordx4 v[20:23], v8, s[36:37]
s_load_dword {sE}, s[74:75], 0
global_load_lds_dwordx4 v11, s[42:43] {PW}
global_load_lds_dwordx4 v12, s[42:43] offset:1024 {PW}
global_load_lds_dwordx4 v13, s[42:43] offset:2048 {PW}
global_load_lds_dwordx4 v18, s[42:43] offset:3072 {PW}
s_bitset1_b32 m0, 16
v_xad_u32 v17, v16, 16, s82
global_load_lds_dwordx4 v14, s[38:39] {PKV}
global_load_lds_dwordx4 v15, s[38:39] offset:1024 {PKV}
global_load_lds_dwordx4 v16, s[38:39] offset:2048 {PKV}
global_load_lds_dwordx4 v17, s[38:39] offset:3072 {PKV}
L_head_end:
s_load_dwordx2 s[32:33], s[0:1], 64
s_lshl_b32 {sW4K}, {sW}, 6
s_lshr_b32 {sW}, {sW}, 6
s_bfe_u32 {sLO}, s2, 0x20003
s_getreg_b32 s70, hwreg(HW_REG_XCC_ID, 0, 4)
s_lshl_b32 s92, {sHKV}, 5
s_or_b32 s70, s70, 0x80
s_lshr_b32 s93, s2, 3
s_add_u32 s93, s93, s92
v_mov_b32 v19, s70
v_mov_b32 v18, s93
s_cmp_eq_u32 {sW}, 3
s_cbranch_scc0 L_nox""")
if P["FAST"] == 1: A("s_mov_b64 exec, 1\nglobal_store_byte v18, v19, s[72:73]\ns_mov_b64 exec, -1")
A(f"""L_nox:
v_lshlrev_b32 v10, 4, v10
s_mov_b32 s26, 1835008
s_mov_b32 s27, 0x20000
s_mov_b32 {sROLE}, 0
s_cmp_gt_u32 {sHKV}, {P['NF']}
s_subb_u32 s91, {sHKV}, 0
s_and_b32 {sF0}, {sHI}, 3
s_lshl2_add_u32 {sF0}, s91, {sF0}
s_xor_b32 {sF0}, {sF0}, {P['X1']}
s_xor_b32 {sCO}, {sHI}, {P['XO']}
s_bfe_u32 {sC2}, s2, 0x30003
s_bfe_u32 {sF1}, s2, 0x10006
s_lshl1_add_u32 {sF1}, s91, {sF1}
s_lshl2_add_u32 s90, {sF1}, {sW}        ; 4*rb+w
s_cmp_eq_u32 {sHKV}, {P['NF']}
s_cbranch_scc1 L_now3
s_cmp_lt_u32 s2, 128
s_cbranch_scc{P['RS']} L_now1
s_mov_b32 {sROLE}, 1
s_mov_b64 s[24:25], s[48:49]
v_mul_u32_u24 v12, 3584, v9
s_mul_i32 s83, {sLO}, 3584
s_add_u32 s83, s83, {sF0}
s_lshl_b32 s83, s83, 7                  ; w1 base
v_add_u32 v12, v12, v10                 ; w1 voffset
""")
tile_dma(WF, "v12", "s83", 3584, LF, (0, 32, 64, 96))
A(f"""s_branch L_now2
L_now1:
s_mov_b32 {sROLE}, 2
s_mov_b64 s[24:25], s[50:51]
v_bfe_u32 v7, v9, 2, 1
v_and_b32 v13, 2, v9
v_add_u32 v13, v13, v7
v_and_b32 v18, 1, v9
v_lshl_add_u32 v13, v13, 1, v18
s_lshl_b32 s91, s90, 8
s_add_u32 s91, s91, {sC2}
s_lshl_b32 s91, s91, 7                  ; w2 base
v_lshl_add_u32 v188, v13, 10, v10
""")
def w2_dma(): tile_dma(WF, "v188", "s91", 1024, LF, (0, 16, 8, 24))
if not W2P: w2_dma()
A("L_now3:")
k_issue(4, 4 + KX)
A("L_now2:")
NS = 0
A(f"""
v_and_b32 {vL}, 63, v0
s_add_u32 {sKV}, {sKV}, {sW4K}
v_lshrrev_b32 {vG}, 4, {vL}
s_mov_b64 s[4:5], s[36:37]
s_mov_b32 s6, 4096
s_mov_b32 s7, 0x20000
""")
k_role(4, HEAD)
if STAMP: A("v_mov_b32 v127, 0\nv_writelane_b32 v127, s96, 63\nv_writelane_b32 v127, s70, 62\ns_getreg_b32 s98, hwreg(HW_REG_HW_ID)\nv_writelane_b32 v127, s98, 58")
if P["DIAG"]: A("s_mov_b32 s94, s96")
stamp("issued0")
if STAMP and "ka" in P["STS"]:
    for n, r in (("pre_ka", "s94"), ("ka", "s100")):
        A("v_writelane_b32 v127, %s, %d ; stamp %s" % (r, nst[0], n)); nst[0] += 1
A(f"""
s_mov_b64 s[16:17], s[40:41]
s_mov_b32 s18, 0x4000000
s_mov_b32 s19, 0x20000
s_mov_b64 s[20:21], s[44:45]
s_mov_b32 s22, 0x400000
s_mov_b32 s23, 0x20000
s_mov_b64 s[28:29], s[74:75]
s_mov_b32 s30, {0x400000 if STAMP else WSZ}
s_mov_b32 s31, 0x20000
s_mov_b32 s34, 4096
s_mov_b32 s35, 0x20000
s_mov_b32 {sSPIN}, 0
v_and_b32 {vN}, 15, {vL}
v_and_b32 {vU}, 3, {vL}
v_bfe_u32 {vHB}, {vL}, 2, 2
v_mov_b32 {vFF}, 0xff
s_mul_i32 s80, {sW}, 1088
s_add_u32 s80, s80, {LXN}
v_lshl_add_u32 v24, {vL}, 4, s80
s_lshl_b32 s80, {sLO}, 8
s_add_u32 s80, s80, {LXN}
v_mul_u32_u24 v25, 1088, {vHB}
v_and_b32 v7, 1, {vG}
v_lshl_add_u32 v25, v7, 3, v25
v_and_b32 v7, 2, {vG}
v_lshl_add_u32 v25, v7, 5, v25
v_add_u32 v25, s80, v25
v_bfe_u32 v7, v9, 2, 1
v_and_b32 v13, 3, v9
v_lshl_add_u32 v13, v7, 4, v13
v_lshl_add_u32 v13, v13, 10, v10
v_lshl_add_u32 v7, {vG}, 2, {vHB}
v_and_b32 v9, 7, v7
v_lshlrev_b32 v9, 1, v9
v_xor_b32 v9, v9, {vU}
v_lshlrev_b32 v9, 3, v9
v_lshl_add_u32 v9, v7, 7, v9
s_lshl_b32 s80, {sW}, 5
v_xor_b32 v26, s80, v9
v_add_u32 v146, {LF}, v26               ; w1
s_add_u32 s80, {sW4K}, {LWO}
v_add_u32 v148, s80, v9
v_xor_b32 v149, 32, v148
v_xor_b32 v150, 64, v148
v_xor_b32 v151, 0x60, v148
v_lshlrev_b32 v7, 2, {vN}
v_lshl_add_u32 v29, {vG}, 13, v7
v_lshl_add_u32 v30, {vG}, 10, v7
v_lshl_add_u32 v7, {vG}, 8, v7
s_lshl_b32 s80, {sW}, 10
s_add_u32 s80, s80, {LRS}
v_add_u32 v147, s80, v7
v_add_u32 v161, 4096, v147
s_lshl_b32 s84, {sHKV}, 4
s_add_u32 s84, s84, {sLO}
s_lshl_b32 s84, s84, 3
s_add_u32 s84, s84, {sHI}
s_lshl_b32 s84, s84, 2
s_add_u32 s84, s84, {sW}
s_lshl_b32 s84, s84, 6
s_add_u32 s84, s84, {QP}
s_lshl_b32 s85, {sF0}, 1
s_lshr_b32 s80, {sW}, 1
s_add_u32 s85, s85, s80
s_lshl_b32 s85, s85, 5
s_add_u32 s85, s85, {sLO}
s_lshl_b32 s85, s85, 1
s_and_b32 s81, {sW}, 1
s_add_u32 s85, s85, s81
s_lshl_b32 s85, s85, 6
s_add_u32 s85, s85, {HP}
s_mul_i32 s70, s70, 0x01010101
""")
def late_setup():
    A(f"""
v_lshl_add_u32 v7, {vG}, 2, {vHB}
v_and_b32 v9, 7, v7
s_lshl_b32 s80, {sW}, 1
v_xor_b32 v9, s80, v9
v_lshlrev_b32 v9, 5, v9
v_lshl_add_u32 v9, v7, 8, v9
v_lshl_add_u32 v27, {vU}, 3, v9
v_xor_b32 v28, 32, v27
v_lshlrev_b32 v7, 1, {vG}
v_xor_b32 v144, {vN}, v7
v_lshlrev_b32 v144, 4, v144
v_lshl_add_u32 v144, {vG}, 8, v144
v_xor_b32 v145, 0x80, v144
s_lshl4_add_u32 s80, {sW}, {LP}
v_mul_u32_u24 v10, 576, {vG}
v_and_b32 v7, 14, {vN}
v_lshl_add_u32 v10, v7, 5, v10
v_and_b32 v7, 1, {vN}
v_lshl_add_u32 v10, v7, 3, v10
v_add_u32 v10, s80, v10
v_mul_u32_u24 v11, 576, {vHB}
v_lshl_add_u32 v11, {vG}, 4, v11
v_add_u32 v11, {LP}, v11
v_lshlrev_b32 v31, 4, {vN}
v_lshl_add_u32 v31, {vG}, 11, v31
s_lshl_b32 s86, {sHKV}, 2
s_add_u32 s86, s86, {sLO}               ; 4*hkv+lo
s_lshl_b32 s87, s86, 4
s_add_u32 s87, s87, {sW}
s_lshl_b32 s87, s87, 9
s_add_u32 s87, s87, {QP}
s_lshl_b32 s88, s86, 2
s_add_u32 s88, s88, {sW}                ; (4*hkv+h)*4+w
s_lshl_b32 s89, s88, 8
s_add_u32 s89, s89, {sCO}
s_lshl_b32 s89, s89, 7
s_lshl_b32 s88, s88, 12
s_add_u32 s88, s88, {OP}                ; O gather
s_lshl_b32 s90, s90, 12
s_add_u32 s90, s90, {HP}                ; h gather
v_xor_b32 v7, {vG}, {vN}
v_lshlrev_b32 v7, 4, v7
v_lshl_add_u32 v7, {vU}, 10, v7
v_lshl_add_u32 v7, {vHB}, 14, v7
s_add_u32 s80, {sW4K}, {LK}
v_add_u32 v152, s80, v7
v_xor_b32 v153, 64, v152
v_xor_b32 v154, 0x80, v152
v_xor_b32 v155, 0xc0, v152
v_lshrrev_b32 v7, 1, {vG}
v_and_b32 v9, 1, {vG}
v_lshlrev_b32 v7, 7, v7
v_lshl_add_u32 v7, {vN}, 3, v7
v_lshl_add_u32 v7, v9, 2, v7
s_mul_i32 s80, {sW}, 320
s_add_u32 s80, s80, {LQ}
v_add_u32 v156, s80, v7
v_mul_u32_u24 v157, 320, {vHB}
v_lshl_add_u32 v157, {vG}, 4, v157
v_add_u32 v157, {LQ}, v157
v_lshlrev_b32 v8, 4, {vG}
v_add_u32 v8, {LMX}, v8
s_lshl_b32 s80, {sW}, 2
v_add_u32 v9, s80, v8
v_lshlrev_b32 v12, 4, {vU}
v_lshl_add_u32 v12, {vG}, 7, v12
v_lshl_add_u32 v12, {vHB}, 10, v12
v_lshlrev_b32 v158, 3, {vN}
v_lshl_add_u32 v158, {vG}, 14, v158
v_and_b32 v7, 1, {vU}
v_lshl_add_u32 v159, v7, 2, {vG}
v_lshl_add_u32 v159, {vHB}, 3, v159
v_lshlrev_b32 v159, 4, v159
v_mov_b32 v160, 0
s_lshl_b32 s80, {sLO}, 3
s_add_u32 s80, s80, {sHI}               ; 8*b+s
s_lshl_b32 s81, {sHKV}, 2
s_add_u32 s81, s81, {sW}
s_lshl_b32 s81, s81, 5
s_add_u32 s81, s81, s80
s_lshl_b32 s81, s81, 4
s_add_u32 s36, s81, {ST}
s_lshl_b32 s37, {sHKV}, 16
s_add_u32 s37, s37, {sW4K}
s_lshl_b32 s80, s80, 7
s_add_u32 s37, s37, s80
s_add_u32 s37, s37, {OP}                ; O publish
s_lshl_b32 s46, s86, 9
s_add_u32 s46, s46, {ST}
v_lshlrev_b32 v164, 4, {vL}
v_add_u32 v165, {LRS}, v164
v_and_b32 v18, 7, {vN}
v_bfe_u32 v19, {vL}, 3, 1
v_lshl_add_u32 v19, {vG}, 4, v19
v_mul_u32_u24 v19, 6144, v19
v_lshl_add_u32 v166, v18, 4, v19
v_lshl_add_u32 v18, v18, 2, {vG}
v_lshlrev_b32 v167, 1, v18
s_mul_i32 s47, {sCO}, 12288
s_lshl_b32 s80, s86, 7
s_add_u32 s47, s47, s80
s_add_u32 s47, s47, {SP}                ; s publish
s_mul_i32 s40, {sC2}, 12288
s_lshl_b32 s80, {sF1}, 7
s_add_u32 s40, s40, s80
s_add_u32 s40, s40, {SP + 4096}         ; g publish
s_sub_u32 s41, s2, 192
s_mul_i32 s42, s41, 6144
s_add_u32 s42, s42, {SP}
s_add_u32 s43, s42, 4096
s_lshl_b32 s83, s41, 6
v_lshlrev_b32 v7, 4, v7
v_lshrrev_b32 v142, v7, {sE}            ; O tags
v_lshrrev_b32 v143, 8, v142
""")
if not P["LATE"]: late_setup()
def fast_load():
    if P["FAST"] == 1: A("s_load_dwordx8 s[44:51], s[72:73], s92")
def fast_eval():
    if P["FAST"] != 1: return
    for i in range(44, 52, 2): A("s_xor_b64 s[%d:%d], s[%d:%d], s[70:71]" % (i, i + 1, i, i + 1))
    A(f"s_or_b64 s[44:45], s[44:45], s[46:47]\ns_or_b64 s[48:49], s[48:49], s[50:51]\ns_or_b64 s[44:45], s[44:45], s[48:49]\ns_cselect_b32 {sFAST}, 1, 0")
def early_wait(n, lbl):
    opts = sorted(set(a + b for a in (KX, 4) for b in (0, 1)))
    for o in opts[:-1]: A(f"s_cmp_gt_u32 s93, {o}\ns_cbranch_scc1 {lbl}_{o}\ns_waitcnt vmcnt({n + o})\n{lbl}_{o}:")
    A(f"s_waitcnt vmcnt({n + opts[-1]})")
A(f"s_cmp_eq_u32 {sW}, 3\ns_cselect_b32 s93, {1 if P['FAST'] == 1 else 0}, 0")
if W2P: A(f"s_cmp_eq_u32 {sROLE}, 1\ns_cselect_b32 s80, 4, {KX}\ns_add_u32 s93, s80, s93")
else: A(f"s_min_u32 s80, {sROLE}, 1\ns_lshl2_add_u32 s93, s80, s93")
early_wait(4 + HEAD, "L_xw")
stamp("x")
for i in range(4): A("v_lshlrev_b32 v%d, 16, v%d\nv_and_b32 v%d, 0xffff0000, v%d" % (32 + 2 * i, 20 + i, 33 + 2 * i, 20 + i))
A("v_readfirstlane_b32 s80, v32")
for i in range(8): A("v_subrev_f32 v%d, s80, v%d" % (44 + i, 32 + i))
A("v_add_f32 v40, v44, v45\nv_mul_f32 v42, v44, v44\nv_add_f32 v41, v46, v47\nv_mul_f32 v43, v45, v45")
for i in range(2, 8):
    A("v_fmac_f32 v%d, v%d, v%d" % (42 + i % 2, 44 + i, 44 + i))
    if i >= 4: A("v_add_f32 v%d, v%d, v%d" % (40 + i % 2, 40 + i % 2, 44 + i))
A("v_add_f32 v40, v40, v41\nv_add_f32 v42, v42, v43")
for c in ("quad_perm:[1,0,3,2]", "quad_perm:[2,3,0,1]", "row_half_mirror", "row_mirror"):
    for r in (40, 42): A("v_add_f32_dpp v%d, v%d, v%d %s %s" % (r, r, r, c, DPP))
for sw in ("16", "32"):
    A("v_mov_b32 v41, v40\nv_mov_b32 v43, v42\nv_permlane%s_swap_b32 v40, v41\nv_permlane%s_swap_b32 v42, v43\nv_add_f32 v40, v40, v41\nv_add_f32 v42, v42, v43" % (sw, sw))
A("v_mul_f32 v40, 0x3b000000, v40\nv_mul_f32 v42, 0x3b000000, v42\nv_fma_f32 v42, -v40, v40, v42\nv_add_f32 v40, s80, v40\nv_max_f32 v42, 0, v42")
rbf2(40, 42, 40, 42, 41)
A("v_add_f32 v42, 0x3727c5ac, v42"); rbf(42)
A("v_sqrt_f32 v42, v42")
for i in range(8): A("v_sub_f32 v%d, v%d, v40" % (32 + i, 32 + i))
rbf(42)
A("v_rcp_f32 v42, v42")
for i in range(4): rbf2(32 + 2 * i, 33 + 2 * i, 32 + 2 * i, 33 + 2 * i, 44 + i)
for i in range(8): A("v_mul_f32 v%d, v%d, v42" % (32 + i, 32 + i))
for i in range(4): A("v_cvt_pk_bf16_f32 v%d, v%d, v%d" % (44 + i, 32 + 2 * i, 33 + 2 * i))
A("ds_write_b128 v24, v[44:47]")
stamp("ln")
k_role(KS[0], KS[1])
A("s_waitcnt lgkmcnt(0)")
A(f"""s_add_u32 {sE}, {sE}, 0x9d5b3701
s_and_b32 {sT[0]}, {sE}, 0xff
s_bfe_u32 {sT[1]}, {sE}, 0x80008
s_bfe_u32 {sT[2]}, {sE}, 0x80010
s_lshr_b32 {sT[3]}, {sE}, 24
v_lshlrev_b32 v7, 3, {vU}
v_lshrrev_b32 v141, v7, {sE}
""")
early_wait(KS[1], "L_wqw")
A("s_barrier")
stamp("wq")
for t in range(4): A("ds_read2_b64 %s, v25 offset0:%d offset1:%d" % (vr(32 + 4 * t, 4), 2 * t, 2 * t + 16))
def proj(addr, lds, voff, soff, lbl):
    for t in range(4):
        for h in range(2): A("ds_read_b64_tr_b16 %s, %s offset:%d" % (vr(48 + 4 * t + 2 * h, 2), addr, lds + t * 4096 + h * 2048))
    for t in range(4):
        A("s_waitcnt lgkmcnt(%d)" % (6 - 2 * t)); mfma(64, 48 + 4 * t, 32 + 4 * t, "0" if t == 0 else None)
    A(f"v_bfi_b32 {lbl}, {vFF}, v141, v64\nbuffer_store_dword {lbl}, {voff}, {WS}, {soff} offen" + ("" if P["FAST"] else " sc1"))
proj("v26", LWQ, "v29", "s84", "v190")
stamp("qpub")

if P["TK"]:
    A(f"s_and_b32 s44, {sE}, 0xffffff00\ns_lshl_b32 s45, {sCO}, 1\ns_add_u32 s45, s45, {sW}\ns_lshl_b32 s45, s45, 7\ns_add_u32 s45, s45, {TKB - 256}")
    A(f"s_lshl_b32 s80, s2, 2\ns_add_u32 s80, s80, {sW}\ns_cmp_eq_u32 s80, 1021\ns_cbranch_scc0 L_notk\nv_mov_b32 v69, s44\nv_lshlrev_b32 v70, 7, {vL}\ns_mov_b64 exec, 0xffff")
    A(f"buffer_store_dword v69, v70, {WS}, 0 offen offset:{TKB} sc1\ns_mov_b64 exec, -1\nL_notk:")
thr[0] = P["THR"]
k_role(KS[1], KS[2])
if P["LATE"]: late_setup()
if W2P: A(f"s_cmp_eq_u32 {sROLE}, 1\ns_cbranch_scc0 L_now1w")
A("s_waitcnt vmcnt(%d)\nL_now1w:\ns_barrier" % (KS[2] - 3))
A(f"s_cmp_eq_u32 {sROLE}, 1\ns_cbranch_scc0 L_noh")
proj("v146", 0, "v30", "s85", "v191")
A("L_noh:")
stamp("hpub")
if P["XL"]: A("ds_write_b128 v24, v[20:23]")
def qgather(r=32):
    for i in range(2): A(f"buffer_load_dwordx4 {vr(r + 4 * i, 4)}, v31, {WS}, s87 offen offset:{256 * i} {PLD}")
def hgather():
    for i in range(2): A(f"buffer_load_dwordx4 {vr(132 + 4 * i, 4)}, v12, {WS}, s90 offen offset:{64 * i} {PLD}")
k_role(KS[2], 16)
seq = []
Q2 = P["QG2"]
for a in range(3):
    if a == NV0:
        if P["FAST"] == 1: A(f"v_and_b32 v19, 28, {vL}\nv_add_u32 v19, s92, v19\nglobal_load_dword v18, v19, s[72:73] sc1")
        qgather(); seq += ["q1"] * 2
        stamp("qg_iss")
    if Q2 and a == NV0 + Q2: qgather(40); seq += ["q2"] * 2
    if a + 1 == P["PRE"]:
        A(f"buffer_load_dword v189, v158, {WS}, s37 offen\nbuffer_load_dword v189, v160, {WS}, s36 offen"); seq += ["p"] * 2
    if a == 2 and not W2P: hgather(); seq += ["h"] * 2
    if a < P["VQ"]: kv_dma(V, VO, LV, a); seq += ["v"] * 4
V3E = P["V3E"]
if V3E: kv_dma(V, VO, LV, 3); seq += ["v"] * 4
stamp("v2_iss")
A("s_waitcnt vmcnt(%d)" % seq[::-1].index("q1"))
for a in range(3):
    for j in range(4): A("ds_read_b128 %s, v%d offset:%d" % (vr(64 + 16 * a + 4 * j, 4), 152 + j, 256 * a))
if P["FAST"] == 1: A(f"v_cmp_ne_u32 vcc, s70, v18\ns_cmp_lg_u64 vcc, 0\ns_cselect_b32 {sFAST}, 1, 0")
if P["FAST"] == 1:
    A(f"s_cbranch_scc0 L_norep\nbuffer_store_dword v190, v29, {WS}, s84 offen sc1\ns_cmp_eq_u32 {sROLE}, 1\ns_cbranch_scc0 L_norep\nbuffer_store_dword v191, v30, {WS}, s85 offen sc1\nL_norep:")
if Q2:
    untag(32, 8, 48)
    A("s_cbranch_vccz L_qok\ns_mov_b64 exec, vcc\ns_waitcnt vmcnt(%d)" % seq[::-1].index("q2"))
    for e in range(8): A("v_mov_b32 v%d, v%d" % (32 + e, 40 + e))
A("s_branch L_qchk\nL_qagain:")
qgather()
A("s_waitcnt vmcnt(0)\nL_qchk:")
untag(32, 8, 48)
retry("L_qagain", "L_qok")
stamp("q_ok")
rscatter8(32)
A("v_cvt_pk_bf16_f32 v32, v32, v33\nds_write_b32 v156, v32\ns_waitcnt lgkmcnt(0)\ns_barrier")
QB = 168
for j in range(4): A("ds_read_b128 %s, v157 offset:%d" % (vr(QB + 4 * j, 4), 64 * j))
for j in range(4): A("ds_read_b128 %s, v%d offset:%d" % (vr(112 + 4 * j, 4) if j < 3 else "v[128:131]", 152 + j, 256 * 3))
for j in range(4):
    A("s_waitcnt lgkmcnt(%d)" % (7 - j))
    for a in range(3): mfma(48 + 4 * a, 64 + 16 * a + 4 * j, QB + 4 * j, "0" if j == 0 else None)
A("s_waitcnt lgkmcnt(0)")
for j in range(4): mfma(60, 112 + 4 * j if j < 3 else 128, QB + 4 * j, "0" if j == 0 else None)
stamp("qk")
if P["VQ"] == 2: kv_dma(V, VO, LV, 2)
F2 = P["F2"] and P["FAST"] == 1 and not V3E
if F2: A("global_load_dword v18, v19, s[72:73] sc1")
if not V3E and P["VQ"] == 3: kv_dma(V, VO, LV, 3)
stamp("v3_iss")
SWP = P["SWP"]
def wo_tile(): tile_dma(WO, "v13", "s89", 1024, LWO, (0, 8, 4, 12))
def wo_dma(pos):
    if P["WOP"] != pos: return
    if SWP: A(f"s_cmp_eq_u32 {sROLE}, 2\ns_cbranch_scc0 L_sw1"); hgather(); w2_dma(); A("s_branch L_sw2\nL_sw1:")
    wo_tile(); A("L_sw2:")
wo_dma(0)
rbf2(48, 49, 48, 52, 53); rbf2(50, 51, 56, 60, 54)
for e in range(4): A("v_mul_f32 v%d, 0x3db504f3, v%d" % (48 + e, 48 + e))
rbf2(48, 49, 48, 49, 52); rbf2(50, 51, 50, 51, 53)
A("v_max_f32 v52, v48, v49\nv_max3_f32 v52, v52, v50, v51")
ROW = ("quad_perm:[1,0,3,2]", "quad_perm:[2,3,0,1]", "row_half_mirror", "row_mirror")
for c in ROW: A("v_max_f32_dpp v52, v52, v52 %s %s" % (c, DPP))
A("ds_write_b32 v9, v52\ns_mov_b32 s80, 0x3fb8aa3b\ns_waitcnt lgkmcnt(0)\ns_barrier\nds_read_b128 v[52:55], v8\ns_waitcnt lgkmcnt(0)")
A("v_max_f32 v52, v52, v53\nv_max3_f32 v56, v52, v54, v55\nv_mul_f32 v52, 0xbfb8aa3b, v56")
for e in range(4): A("v_fma_f32 v%d, v%d, s80, v52" % (48 + e, 48 + e))
for e in range(4): A("v_exp_f32 v%d, v%d" % (48 + e, 48 + e))
A("v_add_f32 v52, v48, v49\nv_cvt_pk_bf16_f32 v54, v48, v49\nv_add_f32 v53, v50, v51\nv_cvt_pk_bf16_f32 v55, v50, v51\nv_add_f32 v52, v52, v53\nds_write_b64 v10, v[54:55]")
for c in ROW: A("v_add_f32_dpp v52, v52, v52 %s %s" % (c, DPP))
A("ds_write_b32 v9, v52 offset:64")
if P["VQ"] == 2: kv_dma(V, VO, LV, 3)
wo_dma(1)
stamp("p_done")
def wreads(r, off):
    for mt in range(4):
        for h in range(2): A("ds_read_b64_tr_b16 %s, v%d offset:%d" % (vr(r + 4 * mt + 2 * h, 2), 148 + mt, off + h * 2048))
def wstage(a, b, addr):
    for mt in range(4): mfma(32 + 4 * mt, a + 4 * mt, b, "0")
    for mt in (0, 2): A("ds_write2_b32 %s, v%d, v%d offset0:%d offset1:%d" % (addr, 32 + 4 * mt, 36 + 4 * mt, 16 * mt, 16 * mt + 16))
def ffn_b(n=None):
    A(f"s_cmp_eq_u32 {sROLE}, 2\ns_cbranch_scc0 L_noffn")
    if n: A("s_waitcnt vmcnt(%d)" % n)
    wreads(80, LF - LWO)
    if not W2P: A("s_waitcnt vmcnt(%d)" % (8 if P["WOP"] == 2 else 12))
    A("s_branch L_hchk\nL_hagain:")
    hgather()
    A("s_waitcnt vmcnt(0)\nL_hchk:")
    untag(132, 8, 140)
    retry("L_hagain", "L_hok")
    rscatter8(132)
    A("v_max_f32 v132, 0, v132\nv_max_f32 v133, 0, v133\nv_cvt_pk_bf16_f32 v132, v132, v133")
    quad_b(136, 132)
    A("s_waitcnt lgkmcnt(0)")
    wstage(80, 136, "v161")
    A("L_noffn:")
def w2_late(pos):
    if W2P == pos:
        A(f"s_cmp_eq_u32 {sROLE}, 2\ns_cbranch_scc0 L_now2l")
        if SWP: wo_tile()
        else: hgather(); w2_dma()
        A("L_now2l:")
def r2_wait(n, lbl, on, tail=""):
    if on: role_wait(n, on, lbl, f"eq_u32 {sROLE}, 2", tail)
    else: A(f"s_waitcnt vmcnt({n}) {tail}")
if not W2P: ffn_b()
w2_late(1)
stamp("ffn")
wo_dma(2)
r2_wait(8, "L_w012", 6 if W2P == 1 else 2 * SWP, "lgkmcnt(0)"); A("s_barrier")
stamp("v012")
A("ds_read_b128 v[60:63], v8 offset:64")
def vreads(t, r):
    A("ds_read_b128 %s, v11 offset:%d" % (vr(64 + 4 * t, 4), 64 * t))
    vreads2(t, r)
def vreads2(t, r):
    for mt in range(2):
        for h in range(2): A("ds_read_b64_tr_b16 %s, v%d offset:%d" % (vr(r + 4 * mt + 2 * h, 2), 27 + mt, t * 8192 + h * 4096))
R3 = (96, 104, 112)
vreads(0, 96); vreads(1, 104)
A(f"v_mov_b32 v58, {sE}\nv_mov_b32 v59, {sE}\ns_lshl_b32 s80, {sW}, 4\ns_waitcnt lgkmcnt(10)")
if STAMP: A(f"v_writelane_b32 v127, {sFAST}, 57")
if F2: A(f"v_cmp_ne_u32 vcc, s70, v18\ns_cmp_lg_u64 vcc, 0\ns_cselect_b32 {sFAST}, 1, 0")
A("v_add_f32 v60, v60, v61\nv_add_f32 v62, v62, v63")
vreads(2, 112)
A("v_add_f32 v57, v60, v62\ns_lshl_b64 exec, 1, s80")
gstore(f"buffer_store_dwordx4 v[56:59], v160, {WS}, s36 offen", "L_ss")
A("s_mov_b64 exec, -1")
w2_late(2)
for t in range(6):
    A("s_waitcnt lgkmcnt(%d)" % (10 if t < 4 else (7, 2)[t - 4]))
    for mt in range(2): mfma(40 + 4 * mt, R3[t % 3] + 4 * mt, 64 + 4 * t, "0" if t == 0 else None)
    if t + 3 < 6: vreads(t + 3, R3[t % 3])
    if t == 3: A("ds_read_b128 v[88:91], v11 offset:384\nds_read_b128 v[92:95], v11 offset:448")
def sgather(r=184): A(f"buffer_load_dwordx4 {vr(r, 4)}, v159, {WS}, s46 offen {PLD}")
def reduce_pub(d, addr, off, soff):
    for i in range(4): A("ds_read_b128 %s, %s offset:%d" % (vr(d + 4 * i, 4), addr, off + 1024 * i))
    A("s_waitcnt lgkmcnt(2)")
    for e in range(0, 4, 2): A("v_pk_add_f32 %s, %s, %s" % (vr(d + e, 2), vr(d + e, 2), vr(d + 4 + e, 2)))
    A("s_waitcnt lgkmcnt(0)")
    for e in range(0, 4, 2): A("v_pk_add_f32 %s, %s, %s" % (vr(d + 8 + e, 2), vr(d + 8 + e, 2), vr(d + 12 + e, 2)))
    for e in range(0, 4, 2): A("v_pk_add_f32 %s, %s, %s" % (vr(d + e, 2), vr(d + e, 2), vr(d + 8 + e, 2)))
    tag(d)
    A(f"buffer_store_dwordx4 {vr(d, 4)}, v166, {WS}, {soff} offen {PST}")
w2_late(3)
sgather()
if P["GE"]:
    A(f"s_lshl_b32 s80, {sW}, 2\ns_add_u32 s80, s80, {sROLE}\ns_cmp_eq_u32 s80, 6\ns_cbranch_scc0 L_nog")
    reduce_pub(168, "v165", 4096, "s40")
    A("s_waitcnt vmcnt(7)\ns_branch L_gdone\nL_nog:")
stamp("pv1")
r2_wait(6, "L_w3", 6 if W2P else 0); A("L_gdone:\ns_barrier")
stamp("v3")
vreads2(6, 96); vreads2(7, 104)
for t in (6, 7):
    A("s_waitcnt lgkmcnt(%d)" % (4 * (7 - t)))
    for mt in range(2): mfma(40 + 4 * mt, R3[t - 6] + 4 * mt, 64 + 4 * t)
A(f"v_bfi_b32 v48, {vFF}, v142, v40\nv_bfi_b32 v49, {vFF}, v143, v44")
gstore(f"buffer_store_dwordx2 v[48:49], v158, {WS}, s37 offen", "L_os")
stamp("o_pub")
def ogather():
    for sh in range(2):
        for i in range(2): A(f"buffer_load_dwordx4 {vr(64 + 8 * sh + 4 * i, 4)}, v12, {WS}, s88 offen offset:{512 * sh + 64 * i} {PLD}")
SCHK = f"v_bitop3_b32 v186, v186, v187, {sE} bitop3:0x7e\nv_cmp_ne_u32 vcc, 0, v186"
if SWP and P["FB"]: ffn_b(7)
if P["SG2"]:
    sgather(56); ogather()
    if SWP and not P["FB"]: ffn_b(12)
    A("s_waitcnt vmcnt(6)")
    stamp("wo_land")
    if W2P and not SWP: ffn_b()
    A(SCHK)
    wreads(96, 0)
    A("s_cbranch_vccz L_sok2\ns_mov_b64 exec, vcc\ns_waitcnt vmcnt(4)")
    for e in range(4): A("v_mov_b32 v%d, v%d" % (184 + e, 56 + e))
    A(SCHK + "\ns_cbranch_vccz L_sok1\ns_mov_b64 exec, vcc\nL_sagain:")
    sgather()
    A("s_waitcnt vmcnt(0)\n" + SCHK)
    retry("L_sagain", "L_sok")
    ogather()
    A("L_sok1:\ns_mov_b64 exec, -1\nL_sok2:")
else:
    ogather()
    if SWP and not P["FB"]: ffn_b(11)
    A("s_waitcnt vmcnt(5)")
    stamp("wo_land")
    if W2P and not SWP: ffn_b()
    wreads(96, 0)
    A("s_branch L_schk\nL_sagain:")
    sgather()
    A("s_waitcnt vmcnt(0)\nL_schk:\n" + SCHK)
    retry("L_sagain", "L_sok")
A(f"v_max_f32_dpp v60, v184, v184 quad_perm:[1,0,3,2] {DPP}")
allred_g("v_max_f32", 60, 61)
A("v_sub_f32 v60, v184, v60\nv_mul_f32 v60, 0x3fb8aa3b, v60\nv_exp_f32 v60, v60\nv_mul_f32 v61, v60, v185")
A(f"v_add_f32_dpp v61, v61, v61 quad_perm:[1,0,3,2] {DPP}")
allred_g("v_add_f32", 61, 62)
A("v_rcp_f32 v61, v61\nv_mul_f32 v60, v60, v61")
A(f"v_mov_b32_dpp v62, v60 quad_perm:[0,0,0,0] {DPP}\nv_mov_b32_dpp v63, v60 quad_perm:[1,1,1,1] {DPP}")
stamp("st_ok")
A("s_branch L_ow\nL_oagain:")
ogather()
A("L_ow:\ns_waitcnt vmcnt(0)")
untag(64, 16, 61)
retry("L_oagain", "L_ook")
stamp("o_ok")
def ticket():
    A(f"v_mov_b32 v60, 1\ns_mov_b64 exec, 1\nbuffer_atomic_add v60, v160, {WS}, s45 offen sc0 sc1\ns_mov_b64 exec, -1")
if P["TK"] == 3:
    A(f"s_cmp_ge_u32 {sW}, 2\ns_cbranch_scc0 L_tk3"); ticket(); A("L_tk3:")
for e in range(0, 8, 2): A("v_pk_mul_f32 %s, %s, v[62:63] op_sel_hi:[1,0]" % (vr(64 + e, 2), vr(64 + e, 2)))
for e in range(0, 8, 2): A("v_pk_fma_f32 %s, %s, v[62:63], %s op_sel:[0,1,0]" % (vr(64 + e, 2), vr(72 + e, 2), vr(64 + e, 2)))
rscatter8(64, True)
A("v_cvt_pk_bf16_f32 v64, v64, v65")
quad_b(68, 64)
A("s_waitcnt lgkmcnt(0)")
wstage(96, 68, "v147")
if not P["GE"]: A(f"v_add_u32 v165, {sW4K}, v165\ns_cmp_eq_u32 {sW}, 0\ns_cselect_b32 s47, s47, s40")
if P["TK"] == 2:
    A(f"s_cmp_ge_u32 {sW}, 2\ns_cbranch_scc0 L_tk2"); ticket(); A("L_tk2:")
A(f"s_cmp_ge_u32 {sW}, 2\ns_waitcnt lgkmcnt(0)\ns_barrier\ns_cbranch_scc1 L_final")
if P["GE"]: A(f"s_cmp_eq_u32 {sW}, 0\ns_cbranch_scc0 L_done")
else: A(f"s_lshl_b32 s80, {sW}, 1\ns_andn2_b32 s80, s80, {sROLE}\ns_cbranch_scc1 L_done")
reduce_pub(32, "v165", 0, "s47")
stamp("s_pub")
A("s_branch L_done")
A("L_final:")
if P["TK"]:
    if P["TK"] >= 2: A("s_branch L_tkw")
    A("L_tkagain:"); ticket()
    A(f"""L_tkw:
s_waitcnt vmcnt(0)
v_readfirstlane_b32 s41, v60
s_xor_b32 s41, s41, s44
s_cmp_lt_u32 s41, 32
s_cbranch_scc1 L_tkok
s_add_u32 {sSPIN}, {sSPIN}, 1
s_cmp_lt_u32 {sSPIN}, {P["SPIN"]}
s_cbranch_scc1 L_tkagain
s_branch L_done
L_tkok:
s_sub_u32 s41, s41, 28
s_cbranch_scc1 L_done
s_lshl_b32 s41, s41, 4
s_bfe_u32 s80, s45, 0x40007
s_add_u32 s41, s41, s80
s_mul_i32 s42, s41, 6144
s_add_u32 s42, s42, {SP}
s_add_u32 s43, s42, 4096
s_lshl_b32 s83, s41, 6""")
    stamp("tk")
    if STAMP: A(f"s_mov_b32 {sSPIN}, 100")
else: A(f"s_cmp_eq_u32 {sW}, 2\ns_cbranch_scc0 L_done\ns_cmp_lt_u32 s41, 64\ns_cbranch_scc0 L_done")
if P["XL"]: A(f"s_lshr_b32 s80, s41, 4\ns_lshl_b32 s80, s80, 6\ns_add_u32 s80, s80, s83\ns_add_u32 s80, s80, {LXN}\nv_add_u32 v62, s80, v167")
else: A(f"buffer_load_ushort v60, v167, {X}, s83 offen")
def pka(d, a, b, n):
    for e in range(0, n, 2): A("v_pk_add_f32 %s, %s, %s" % (vr(d + e, 2), vr(a + e, 2), vr(b + e, 2)))
def ggather(l):
    A(f"buffer_load_dwordx4 v[48:51], v164, {WS}, s43 offen {PLD}")
    for e in range(4): A("v_mov_b32 v%d, %s" % (52 + e, sT[e]))
    A(f"s_mov_b32 s80, exec_hi\ns_and_b32 exec_hi, exec_hi, 0xffff\ns_cbranch_execz {l}\nbuffer_load_dwordx4 v[52:55], v164, {WS}, s43 offen offset:1024 {PLD}\n{l}:\ns_mov_b32 exec_hi, s80")
def fgather():
    for i in range(4): A(f"buffer_load_dwordx4 {vr(32 + 4 * i, 4)}, v164, {WS}, s42 offen offset:{1024 * i} {PLD}")
def red8(r):
    for e in range(2): A("v_permlane32_swap_b32 v%d, v%d" % (r + e, r + 2 + e))
    pka(r, r, r + 2, 2)
    A("v_permlane16_swap_b32 v%d, v%d\nv_add_f32 v%d, v%d, v%d\nv_add_f32_dpp v%d, v%d, v%d row_ror:8 %s" % (r, r + 1, r, r, r + 1, r, r, r, DPP))
    rbf(r)
ggather("L_gs1")
if P["FIN"] == 2: A("s_waitcnt vmcnt(0)")
fgather()
if P["XL"]: A("ds_read_u16 v60, v62")
A("s_waitcnt vmcnt(4) lgkmcnt(0)\ns_branch L_gchk\nL_gagain:")
ggather("L_gs2")
A("s_waitcnt vmcnt(0)\nL_gchk:")
untag(48, 8, 61)
retry("L_gagain", "L_gok")
pka(48, 48, 52, 4)
A("v_lshlrev_b32 v60, 16, v60")
red8(48)
A("v_mul_f32 v49, 0xbfb8aa3b, v48\nv_exp_f32 v49, v49\nv_add_f32 v49, 1.0, v49\nv_rcp_f32 v49, v49\nv_mul_f32 v48, v48, v49")
rbf(48)
A("s_branch L_fchk\nL_fagain:")
fgather()
A("L_fchk:\ns_waitcnt vmcnt(0)")
untag(32, 16, 61)
retry("L_fagain", "L_fok")
stamp("f_ok")
pka(32, 32, 40, 8); pka(32, 32, 36, 4)
red8(32)
A("v_mul_f32 v32, v32, v48"); rbf(32)
A("v_add_f32 v32, v60, v32\nv_cvt_pk_bf16_f32 v32, v32, v32")
A(f"s_mov_b32 exec_lo, 0x00ff00ff\ns_mov_b32 exec_hi, 0x00ff00ff\nbuffer_store_short v32, v167, {OUT}, s83 offen")
A(f"s_cmp_eq_u32 s41, 0\ns_cbranch_scc0 L_done\nv_mov_b32 v33, {sE}\ns_mov_b64 exec, 1\nbuffer_store_dword v33, v160, {WS}, 0 offen")
A("L_done:")
if P["DIAG"]:
    stamp("end")
    if P["DG"] >= 0: A(f"s_cmp_eq_u32 {sHKV}, {P['DG']}\ns_cselect_b32 s94, s94, s96")
    if P["DIAG"] == "xcc": A("s_and_b32 s94, s70, 7\ns_mul_i32 s94, s94, 100\ns_cmp_eq_u32 s2, 3\ns_cselect_b32 s94, s94, 0\ns_add_u32 s94, s94, s96")
    A("s_sub_u32 s94, s94, s96\ns_lshl_b32 s94, s94, 2\ns_add_u32 s94, s94, 4000\nL_diag:\ns_memrealtime s[98:99]\ns_waitcnt lgkmcnt(0)\ns_sub_u32 s98, s98, s96\ns_cmp_lt_u32 s98, s94\ns_cbranch_scc1 L_diag")
if STAMP:
    A("s_mov_b64 exec, -1")
    stamp("end")
    A(f"v_writelane_b32 v127, {sSPIN}, 61\nv_writelane_b32 v127, {sFAST}, 59")
    A(f"s_lshl_b32 s80, s2, 10\ns_add_u32 s80, s80, {STP}\nv_lshlrev_b32 v7, 2, v0\nbuffer_store_dword v127, v7, {WS}, s80 offen")
A("L_end:\ns_endpgm\n.fill 8448 - (. - %s), 1, 0" % KN if not STAMP else "L_end:\ns_endpgm\n.fill 2048, 1, 0")
hdr = open("recurrent_scan__sliding_block_cached__dense_activation_relu__decode.s.ref").read().split("; Override launch")[0]
print(hdr + "; @launch grid=(256,1,1) block=(256,1,1) lds=%d" % LDS_BYTES)
print('.amdgcn_target "amdgcn-amd-amdhsa--gfx950"\n.text\n.globl %s\n.p2align 8\n.type %s,@function\n%s:' % (KN, KN, KN))
print(A.text())
print('.section .rodata,"a"\n.p2align 6\n.amdhsa_kernel %s\n  .amdhsa_next_free_vgpr 192\n  .amdhsa_next_free_sgpr 102\n  .amdhsa_accum_offset 192\n  .amdhsa_group_segment_fixed_size 0\n  .amdhsa_kernarg_size 88\n  .amdhsa_user_sgpr_count 2\n  .amdhsa_user_sgpr_kernarg_segment_ptr 1\n  .amdhsa_system_sgpr_workgroup_id_x 1\n.end_amdhsa_kernel' % KN)
```

```python
import sys
from asmlib import Asm
KN = "recurrent_scan__sliding_block_cached__dense_activation_relu__decode_kernel"
P = dict(RPAD=0, TOT=0, AL=0, PAD=0, OW=1, TW=1, RP=3, DG=-1, THR=0, VQ=3, W2P=1, F2=1, NF=7, FB=1, SWP=1, RS=1, KX=2, STS="", WOP=1, ROT=20992, FAST=1, X1=2, XO=2, XL=1, SG2=1, FIN=1, TLB=0, FLP=2, V3E=0, LATE=1, PRE=0, TK=1, GE=1, QG2=2, KS="4+5+10", NK0=2, NV0=0, PKV="nt", PW="nt", STAMP=0, SPIN=200000, WARM=2, QX=0, PSTG="sc1", FINE=0, SLEEP=0, PST="sc1", PLD="sc1", K2E=1, DIAG="")
for a in sys.argv[1:]:
    k, v = a.split("=")
    P[k] = type(P[k])(v) if v != "def" else ""
if P["W2P"] and P["GE"] == 1: P["GE"] = 0
W4 = P["WOP"] == 4
if W4: P["SWP"] = 0; P["W2P"] = max(P["W2P"], 4)
PSTG = P["PSTG"]
PST, PLD = P["PST"].replace("_", " "), P["PLD"].replace("_", " ")
NK0, NV0, PKV, PW, STAMP = P["NK0"], P["NV0"], P["PKV"], P["PW"], P["STAMP"]
LV, LK, LF, LS = 0, 65536, 131072, 147456
LWQ, LWO = LV, LK + 49152
LXN = LS; LQ = LXN + 4352; LMX = LQ + 1280; LL = LMX + 64; LP = LL + 64; LRS = LP + 2304 + 128; LRG = LRS + 4096
LDS_BYTES = LRG + 4096
assert LRS % 256 == 0 and LDS_BYTES <= 163840
QP, HP, ST, OP, SP, WSZ = 0x1000, 0x41000, 0x79000, 0x80000, 0x100000, 0x160000
STP = 0x200000
TKB = 0x800
DPP = "row_mask:0xf bank_mask:0xf"
A = Asm()
nst = [0]
def stamp(name):
    if P["DIAG"] == name: A("s_memrealtime s[94:95]\ns_waitcnt lgkmcnt(0)")
    if not STAMP or (P["STS"] and name not in P["STS"].split("+")): return
    i = nst[0]; nst[0] += 1
    A("s_memrealtime s[98:99]\ns_waitcnt lgkmcnt(0)\nv_writelane_b32 v127, s98, %d ; stamp %s" % (i, name))
    print("stamp", i, name, file=sys.stderr)
X, WQ, K, V, WO, WF, WS, OUT = ("s[%d:%d]" % (i, i + 3) for i in range(4, 36, 4))
sW, sHKV, sLO, sHI, sROLE, sE = "s52", "s53", "s55", "s56", "s57", "s60"
sT = ["s61", "s62", "s63", "s64"]
sKV, sW4K = "s58", "s59"
sM0, sM1, sM2, sM3, sM01 = "s[66:67]", "s[68:69]", "s[70:71]", "s[72:73]", "s[74:75]"
sF0, sF1 = "s76", "s77"
sSPIN = "s78"
sKS, sCO, sC2 = "s66", "s67", "s68"
vL, vN, vG, vU, vHB, vFF = "v1", "v2", "v3", "v4", "v5", "v6"
def vr(a, n): return "v[%d:%d]" % (a, a + n - 1)

thr = [0]
def tile_dma(srd, voff, sbase, pitch, lds, rows=(0, 8, 16, 24)):
    A("s_add_u32 m0, %s, %d" % (sW4K, lds))
    for i in range(4):
        if i: A("s_add_i32 %s, %s, %d" % (sbase, sbase, (rows[i] - rows[i - 1]) * pitch - 1024))
        A("buffer_load_dwordx4 %s, %s, %s offen offset:%d %s lds" % (voff, srd, sbase, 1024 * i, PW))
def kv_dma(srd, voffs, lds, a, i0=0, i1=4):
    if i0 == i1: return
    if srd == K:
        if i0 == 0:
            d = a ^ (a - 1)
            for v in voffs: A("v_xor_b32 %s, %d, %s" % (v, d << 14 | d << 6, v))
        A("s_add_u32 m0, %s, %d" % (sW4K, lds + a * 16384))
        for i in range(i0, i1):
            if thr[0]: A("s_waitcnt vmcnt(%d)" % (thr[0] - 1))
            A("global_load_lds_dwordx4 %s, s[38:39] offset:%d %s" % (voffs[i], 1024 * i, PKV))
        return
    A("s_add_u32 m0, %s, %d\ns_xor_b32 s79, %s, %d" % (sW4K, lds + a * 16384, sKV, a * 16384))
    for i in range(i0, i1):
        if thr[0]: A("s_waitcnt vmcnt(%d)" % (thr[0] - 1))
        A("buffer_load_dwordx4 %s, %s, s79 offen offset:%d %s lds" % (voffs[i % len(voffs)], srd, 1024 * i, PKV))
def tag(r):
    for e in range(4): A("v_bfi_b32 v%d, %s, %s, v%d" % (r + e, vFF, sT[e], r + e))
def untag(r, n, t):
    for e in range(n): A("v_xor_b32 v%d, %s, v%d" % (r + e, sT[e % 4], r + e))
    A("v_or3_b32 v%d, v%d, v%d, v%d" % (t, r, r + 1, r + 2))
    i = 3
    while i + 1 < n:
        A("v_or3_b32 v%d, v%d, v%d, v%d" % (t, t, r + i, r + i + 1)); i += 2
    A("v_bitop3_b32 v%d, v%d, v%d, %s bitop3:0xa8" % (t, t, r + i, vFF))
    A("v_cmp_ne_u32 vcc, 0, v%d" % t)
def retry(lbl_again, lbl_ok):
    A("s_cbranch_vccz %s\ns_mov_b64 exec, vcc\n" % lbl_ok + ("s_sleep %d\n" % P["SLEEP"] if P["SLEEP"] else "") + "s_add_u32 %s, %s, 1\ns_cmp_lt_u32 %s, %d\ns_cbranch_scc1 %s\n%s:" % (sSPIN, sSPIN, sSPIN, P["SPIN"], lbl_again, lbl_ok))
    A("s_mov_b64 exec, -1")
def rscatter8(r, alt=False):
    for e in range(4): A("v_permlane32_swap_b32 v%d, v%d" % (r + e, r + 4 + e))
    for e in range(0, 4, 2): A("v_pk_add_f32 %s, %s, %s" % (vr(r + e, 2), vr(r + e, 2), vr(r + 4 + e, 2)))
    pr = ((0, 1), (2, 3)) if alt else ((0, 2), (1, 3))
    for a, b in pr: A("v_permlane16_swap_b32 v%d, v%d" % (r + a, r + b))
    for e, (a, b) in enumerate(pr): A("v_add_f32 v%d, v%d, v%d" % (r + e, r + a, r + b))
def allred_g(op, r, t):
    A("v_mov_b32 v%d, v%d\nv_permlane16_swap_b32 v%d, v%d\n%s v%d, v%d, v%d" % (t, r, r, t, op, r, r, t))
    A("v_mov_b32 v%d, v%d\nv_permlane32_swap_b32 v%d, v%d\n%s v%d, v%d, v%d" % (t, r, r, t, op, r, r, t))
def allred64(r, t):
    for c in ("quad_perm:[1,0,3,2]", "quad_perm:[2,3,0,1]", "row_half_mirror", "row_mirror"):
        A("v_add_f32_dpp v%d, v%d, v%d %s %s" % (r, r, r, c, DPP))
    allred_g("v_add_f32", r, t)
def rbf(r):
    A("v_cvt_pk_bf16_f32 v%d, v%d, v%d\nv_and_b32 v%d, 0xffff0000, v%d" % (r, r, r, r, r))
def rbf2(d0, d1, a, b, t):
    A("v_cvt_pk_bf16_f32 v%d, v%d, v%d\nv_lshlrev_b32 v%d, 16, v%d\nv_and_b32 v%d, 0xffff0000, v%d" % (t, a, b, d0, t, d1, t))
def quad_b(dst, src):
    for i, r in enumerate((0, 1, 2, 3)):
        A("v_mov_b32_dpp v%d, v%d quad_perm:[%d,%d,%d,%d] %s" % (dst + i, src, r, r, r, r, DPP))
def mfma(d, a, b, c=None):
    A("v_mfma_f32_16x16x32_bf16 %s, %s, %s, %s" % (vr(d, 4), vr(b, 4), vr(a, 4), vr(d, 4) if c is None else c))

sFAST = "s69"
def gstore(ins, lbl):
    if P["FAST"] == 0: A(ins + " sc1"); return
    if P["FAST"] == 2: A(ins); return
    A(f"s_cmp_eq_u32 {sFAST}, 0\ns_cbranch_scc1 {lbl}_f\n{ins} sc1\ns_branch {lbl}_e\n{lbl}_f:\n{ins}\n{lbl}_e:")
def role_wait(n, extra, lbl, role, tail=""):
    A(f"s_cmp_{role}\ns_cbranch_scc1 {lbl}\ns_waitcnt vmcnt({n})\n{lbl}:\ns_waitcnt vmcnt({n + extra}) {tail}")
KO = ["v14", "v15", "v16", "v17"]; VO = ["v144", "v145"]
KS = [int(x) for x in P["KS"].split("+")] + [16]
HEAD = KS[0]
def k_issue(p0, p1):
    while p0 < p1:
        a = p0 // 4; e = min(p1, 4 * a + 4)
        kv_dma(K, KO, LK, a, p0 - 4 * a, e - 4 * a); p0 = e
nk = [0]
assert KS[2] + P["KX"] <= 16
W2P = P["W2P"]; KX = P["KX"] if W2P else 0
def k_role(p0, p1):
    if not KX: k_issue(p0, p1); return
    nk[0] += 1; l = "L_k%d" % nk[0]
    A(f"s_cmp_eq_u32 {sROLE}, 1\ns_cbranch_scc1 {l}a"); k_issue(min(p0 + KX, 16), min(p1 + KX, 16))
    A(f"s_branch {l}b\n{l}a:"); k_issue(p0, p1); A(f"{l}b:")
if STAMP or P["DIAG"]: A("s_memrealtime s[96:97]")
A(f"""
s_load_dwordx16 s[36:51], s[0:1], 0
s_load_dwordx4 s[72:75], s[0:1], 72
s_getpc_b64 s[80:81]
v_mad_u64_u32 v[162:163], vcc, v0, 36, s[80:81]
s_cmpk_ge_u32 s2, 256
s_cbranch_scc1 L_end
global_load_dword v162, v[162:163], off
v_readfirstlane_b32 {sW}, v0
v_lshrrev_b32 v9, 3, v0
v_lshlrev_b32 v8, 4, v0                 ; x offset
v_bitop3_b32 v10, v9, v0, 7 bitop3:0x28
s_and_b32 {sHKV}, s2, 7
s_lshr_b32 {sHI}, s2, 5
s_lshl3_add_u32 s81, {sHKV}, {sHI}
s_and_b32 s80, s2, 24
s_lshl_b32 s80, s80, 10
s_add_u32 s81, s81, s80
s_lshl_b32 s81, s81, 7
v_lshl_add_u32 v11, v9, 9, v10
s_bfm_b32 s82, 8, 10
v_lshl_add_u32 v11, v11, 4, s81
s_lshl_b32 m0, {sW}, 6
v_add_u32 v12, s82, v11
v_add_u32 v13, s82, v12
v_add_u32 v18, s82, v13
s_and_b32 {sKV}, s2, 31
s_lshl_b32 {sKV}, {sKV}, 5
s_add_u32 {sKV}, {sKV}, {sHI}
s_addk_i32 {sKV}, 24
s_lshl_b32 {sKV}, {sKV}, 16
s_lshl1_add_u32 {sKV}, s80, {sKV}
s_movk_i32 s82, 3072
v_add_u32 v14, {sKV}, v8
v_xad_u32 v15, v14, 16, s82
v_xad_u32 v16, v15, 48, s82
s_waitcnt lgkmcnt(0)
global_load_dwordx4 v[20:23], v8, s[36:37]
s_load_dword {sE}, s[74:75], 0
global_load_lds_dwordx4 v11, s[42:43] {PW}
global_load_lds_dwordx4 v12, s[42:43] offset:1024 {PW}
global_load_lds_dwordx4 v13, s[42:43] offset:2048 {PW}
global_load_lds_dwordx4 v18, s[42:43] offset:3072 {PW}
s_bitset1_b32 m0, 16
v_xad_u32 v17, v16, 16, s82
global_load_lds_dwordx4 v14, s[38:39] {PKV}
global_load_lds_dwordx4 v15, s[38:39] offset:1024 {PKV}
global_load_lds_dwordx4 v16, s[38:39] offset:2048 {PKV}
global_load_lds_dwordx4 v17, s[38:39] offset:3072 {PKV}
L_head_end:
s_load_dwordx2 s[32:33], s[0:1], 64
s_lshl_b32 {sW4K}, {sW}, 6
s_lshr_b32 {sW}, {sW}, 6
s_bfe_u32 {sLO}, s2, 0x20003
s_getreg_b32 s70, hwreg(HW_REG_XCC_ID, 0, 4)
s_lshl_b32 s92, {sHKV}, 5
s_lshr_b32 s93, s2, 3
s_add_u32 s93, s93, s92""")
TW = P["TW"]; TB = 0x400
if TW: A("s_lshl_b32 s71, s93, 2\ns_lshl_b32 s92, s92, 2")
else:
    A(f"s_or_b32 s70, s70, 0x80\nv_mov_b32 v19, s70\nv_mov_b32 v18, s93\ns_cmp_eq_u32 {sW}, 3\ns_cbranch_scc0 L_nox")
    if P["FAST"] == 1: A("s_mov_b64 exec, 1\nglobal_store_byte v18, v19, s[72:73]\ns_mov_b64 exec, -1")
def look(): A(f"buffer_load_dword v18, v19, {WS}, s92 offen offset:{TB} sc1" if TW else "global_load_dword v18, v19, s[72:73] sc1")
A(f"""L_nox:
v_lshlrev_b32 v10, 4, v10
s_mov_b32 s26, 1835008
s_mov_b32 s27, 0x20000
s_mov_b32 {sROLE}, 0
s_cmp_gt_u32 {sHKV}, {P['NF']}
s_subb_u32 s91, {sHKV}, 0
s_and_b32 {sF0}, {sHI}, 3
s_lshl2_add_u32 {sF0}, s91, {sF0}
s_xor_b32 {sF0}, {sF0}, {P['X1']}
s_xor_b32 {sCO}, {sHI}, {P['XO']}
s_bfe_u32 {sC2}, s2, 0x30003
s_bfe_u32 {sF1}, s2, 0x10006
s_lshl1_add_u32 {sF1}, s91, {sF1}
s_lshl2_add_u32 s90, {sF1}, {sW}        ; 4*rb+w
s_cmp_eq_u32 {sHKV}, {P['NF']}
s_cbranch_scc1 L_now3
s_cmp_lt_u32 s2, 128
s_cbranch_scc{P['RS']} L_now1
s_mov_b32 {sROLE}, 1
s_mov_b64 s[24:25], s[48:49]
v_mul_u32_u24 v12, 3584, v9
s_mul_i32 s83, {sLO}, 3584
s_add_u32 s83, s83, {sF0}
s_lshl_b32 s83, s83, 7                  ; w1 base
v_add_u32 v12, v12, v10                 ; w1 voffset
""")
tile_dma(WF, "v12", "s83", 3584, LF, (0, 32, 64, 96))
A(f"""s_branch L_now2
L_now1:
s_mov_b32 {sROLE}, 2
s_mov_b64 s[24:25], s[50:51]
v_bfe_u32 v7, v9, 2, 1
v_and_b32 v13, 2, v9
v_add_u32 v13, v13, v7
v_and_b32 v18, 1, v9
v_lshl_add_u32 v13, v13, 1, v18
s_lshl_b32 s91, s90, 8
s_add_u32 s91, s91, {sC2}
s_lshl_b32 s91, s91, 7                  ; w2 base
v_lshl_add_u32 v188, v13, 10, v10
""")
def w2_dma(): tile_dma(WF, "v188", "s91", 1024, LF, (0, 16, 8, 24))
if not W2P: w2_dma()
A("L_now3:")
k_issue(4, 4 + KX)
A("L_now2:")
NS = 0
A(f"""
v_and_b32 {vL}, 63, v0
s_add_u32 {sKV}, {sKV}, {sW4K}
v_lshrrev_b32 {vG}, 4, {vL}
s_mov_b64 s[4:5], s[36:37]
s_mov_b32 s6, 4096
s_mov_b32 s7, 0x20000
""")
k_role(4, HEAD)
if STAMP: A("v_mov_b32 v127, 0\nv_writelane_b32 v127, s96, 63\nv_writelane_b32 v127, s70, 62\ns_getreg_b32 s98, hwreg(HW_REG_HW_ID)\nv_writelane_b32 v127, s98, 58\ns_getpc_b64 s[98:99]\nv_writelane_b32 v127, s98, 56")
if P["DIAG"]: A("s_mov_b32 s94, s96")
stamp("issued0")
if STAMP and "ka" in P["STS"]:
    for n, r in (("pre_ka", "s94"), ("ka", "s100")):
        A("v_writelane_b32 v127, %s, %d ; stamp %s" % (r, nst[0], n)); nst[0] += 1
A(f"""
s_mov_b64 s[16:17], s[40:41]
s_mov_b32 s18, 0x4000000
s_mov_b32 s19, 0x20000
s_mov_b64 s[20:21], s[44:45]
s_mov_b32 s22, 0x400000
s_mov_b32 s23, 0x20000
s_mov_b64 s[28:29], s[74:75]
s_mov_b32 s30, {0x400000 if STAMP else WSZ}
s_mov_b32 s31, 0x20000
s_mov_b32 s34, 4096
s_mov_b32 s35, 0x20000
s_mov_b32 {sSPIN}, 0
v_and_b32 {vN}, 15, {vL}
v_and_b32 {vU}, 3, {vL}
v_bfe_u32 {vHB}, {vL}, 2, 2
v_mov_b32 {vFF}, 0xff
s_mul_i32 s80, {sW}, 1088
s_add_u32 s80, s80, {LXN}
v_lshl_add_u32 v24, {vL}, 4, s80
s_lshl_b32 s80, {sLO}, 8
s_add_u32 s80, s80, {LXN}
v_mul_u32_u24 v25, 1088, {vHB}
v_and_b32 v7, 1, {vG}
v_lshl_add_u32 v25, v7, 3, v25
v_and_b32 v7, 2, {vG}
v_lshl_add_u32 v25, v7, 5, v25
v_add_u32 v25, s80, v25
v_bfe_u32 v7, v9, 2, 1
v_and_b32 v13, 3, v9
v_lshl_add_u32 v13, v7, 4, v13
v_lshl_add_u32 v13, v13, 10, v10
v_lshl_add_u32 v7, {vG}, 2, {vHB}
v_and_b32 v9, 7, v7
v_lshlrev_b32 v9, 1, v9
v_xor_b32 v9, v9, {vU}
v_lshlrev_b32 v9, 3, v9
v_lshl_add_u32 v9, v7, 7, v9
s_lshl_b32 s80, {sW}, 5
v_xor_b32 v26, s80, v9
v_add_u32 v146, {LF}, v26               ; w1
s_add_u32 s80, {sW4K}, {LWO}
v_add_u32 v148, s80, v9
v_xor_b32 v149, 32, v148
v_xor_b32 v150, 64, v148
v_xor_b32 v151, 0x60, v148
v_lshlrev_b32 v7, 2, {vN}
v_lshl_add_u32 v29, {vG}, 13, v7
v_lshl_add_u32 v30, {vG}, 10, v7
v_lshl_add_u32 v7, {vG}, 8, v7
s_lshl_b32 s80, {sW}, 10
s_add_u32 s80, s80, {LRS}
v_add_u32 v147, s80, v7
v_add_u32 v161, 4096, v147
s_lshl_b32 s84, {sHKV}, 4
s_add_u32 s84, s84, {sLO}
s_lshl_b32 s84, s84, 3
s_add_u32 s84, s84, {sHI}
s_lshl_b32 s84, s84, 2
s_add_u32 s84, s84, {sW}
s_lshl_b32 s84, s84, 6
s_add_u32 s84, s84, {QP}
s_lshl_b32 s85, {sF0}, 1
s_lshr_b32 s80, {sW}, 1
s_add_u32 s85, s85, s80
s_lshl_b32 s85, s85, 5
s_add_u32 s85, s85, {sLO}
s_lshl_b32 s85, s85, 1
s_and_b32 s81, {sW}, 1
s_add_u32 s85, s85, s81
s_lshl_b32 s85, s85, 6
s_add_u32 s85, s85, {HP}
""")
if not TW: A("s_mul_i32 s70, s70, 0x01010101")
def late_setup():
    A(f"""
v_lshl_add_u32 v7, {vG}, 2, {vHB}
v_and_b32 v9, 7, v7
s_lshl_b32 s80, {sW}, 1
v_xor_b32 v9, s80, v9
v_lshlrev_b32 v9, 5, v9
v_lshl_add_u32 v9, v7, 8, v9
v_lshl_add_u32 v27, {vU}, 3, v9
v_xor_b32 v28, 32, v27
v_lshlrev_b32 v7, 1, {vG}
v_xor_b32 v144, {vN}, v7
v_lshlrev_b32 v144, 4, v144
v_lshl_add_u32 v144, {vG}, 8, v144
v_xor_b32 v145, 0x80, v144
s_lshl4_add_u32 s80, {sW}, {LP}
v_mul_u32_u24 v10, 576, {vG}
v_and_b32 v7, 14, {vN}
v_lshl_add_u32 v10, v7, 5, v10
v_and_b32 v7, 1, {vN}
v_lshl_add_u32 v10, v7, 3, v10
v_add_u32 v10, s80, v10
v_mul_u32_u24 v11, 576, {vHB}
v_lshl_add_u32 v11, {vG}, 4, v11
v_add_u32 v11, {LP}, v11
v_lshlrev_b32 v31, 4, {vN}
v_lshl_add_u32 v31, {vG}, 11, v31
s_lshl_b32 s86, {sHKV}, 2
s_add_u32 s86, s86, {sLO}               ; 4*hkv+lo
s_lshl_b32 s87, s86, 4
s_add_u32 s87, s87, {sW}
s_lshl_b32 s87, s87, 9
s_add_u32 s87, s87, {QP}
s_lshl_b32 s88, s86, 2
s_add_u32 s88, s88, {sW}                ; (4*hkv+h)*4+w
s_lshl_b32 s89, s88, 8
s_add_u32 s89, s89, {sCO}
s_lshl_b32 s89, s89, 7
s_lshl_b32 s88, s88, 12
s_add_u32 s88, s88, {OP}                ; O gather
s_lshl_b32 s90, s90, 12
s_add_u32 s90, s90, {HP}                ; h gather
v_xor_b32 v7, {vG}, {vN}
v_lshlrev_b32 v7, 4, v7
v_lshl_add_u32 v7, {vU}, 10, v7
v_lshl_add_u32 v7, {vHB}, 14, v7
s_add_u32 s80, {sW4K}, {LK}
v_add_u32 v152, s80, v7
v_xor_b32 v153, 64, v152
v_xor_b32 v154, 0x80, v152
v_xor_b32 v155, 0xc0, v152
v_lshrrev_b32 v7, 1, {vG}
v_and_b32 v9, 1, {vG}
v_lshlrev_b32 v7, 7, v7
v_lshl_add_u32 v7, {vN}, 3, v7
v_lshl_add_u32 v7, v9, 2, v7
s_mul_i32 s80, {sW}, 320
s_add_u32 s80, s80, {LQ}
v_add_u32 v156, s80, v7
v_mul_u32_u24 v157, 320, {vHB}
v_lshl_add_u32 v157, {vG}, 4, v157
v_add_u32 v157, {LQ}, v157
v_lshlrev_b32 v8, 4, {vG}
v_add_u32 v8, {LMX}, v8
s_lshl_b32 s80, {sW}, 2
v_add_u32 v9, s80, v8
v_lshlrev_b32 v12, 4, {vU}
v_lshl_add_u32 v12, {vG}, 7, v12
v_lshl_add_u32 v12, {vHB}, 10, v12
v_lshlrev_b32 v158, 3, {vN}
v_lshl_add_u32 v158, {vG}, 14, v158
v_and_b32 v7, 1, {vU}
v_lshl_add_u32 v159, v7, 2, {vG}
v_lshl_add_u32 v159, {vHB}, 3, v159
v_lshlrev_b32 v159, 4, v159
v_mov_b32 v160, 0
s_lshl_b32 s80, {sLO}, 3
s_add_u32 s80, s80, {sHI}               ; 8*b+s
s_lshl_b32 s81, {sHKV}, 2
s_add_u32 s81, s81, {sW}
s_lshl_b32 s81, s81, 5
s_add_u32 s81, s81, s80
s_lshl_b32 s81, s81, 4
s_add_u32 s36, s81, {ST}
s_lshl_b32 s37, {sHKV}, 16
s_add_u32 s37, s37, {sW4K}
s_lshl_b32 s80, s80, 7
s_add_u32 s37, s37, s80
s_add_u32 s37, s37, {OP}                ; O publish
s_lshl_b32 s46, s86, 9
s_add_u32 s46, s46, {ST}
v_lshlrev_b32 v164, 4, {vL}
v_add_u32 v165, {LRS}, v164
v_and_b32 v18, 7, {vN}
v_bfe_u32 v19, {vL}, 3, 1
v_lshl_add_u32 v19, {vG}, 4, v19
v_mul_u32_u24 v19, 6144, v19
v_lshl_add_u32 v166, v18, 4, v19
v_lshl_add_u32 v18, v18, 2, {vG}
v_lshlrev_b32 v167, 1, v18
s_mul_i32 s47, {sCO}, 12288
s_lshl_b32 s80, s86, 7
s_add_u32 s47, s47, s80
s_add_u32 s47, s47, {SP}                ; s publish
s_mul_i32 s40, {sC2}, 12288
s_lshl_b32 s80, {sF1}, 7
s_add_u32 s40, s40, s80
s_add_u32 s40, s40, {SP + 4096}         ; g publish
s_sub_u32 s41, s2, 192
""")
    if P["TK"] == 4:
        A(f"""s_lshl_b32 s41, {sCO}, 1
s_lshl4_add_u32 s41, {sW}, s41
v_bfe_u32 v18, {vL}, 3, 1
v_mul_u32_u24 v19, 6016, v18
v_lshl_add_u32 v19, {vN}, 4, v19
v_lshl_add_u32 v164, {vG}, 7, v19       ; half*6144 + 16*(n&7) + 128*g
v_lshl_add_u32 v167, v18, 6, v167
s_lshl_b32 s80, {sW}, 6
s_lshl_b32 s81, s41, 6
s_add_u32 s80, s80, s81
s_add_u32 s80, s80, {LXN}
v_add_u32 v163, s80, v167""")
    A(f"""s_mul_i32 s42, s41, 6144
s_add_u32 s42, s42, {SP}
s_add_u32 s43, s42, 4096
s_lshl_b32 s83, s41, 6
v_lshlrev_b32 v7, 4, v7
v_lshrrev_b32 v142, v7, {sE}            ; O tags
v_lshrrev_b32 v143, 8, v142
""")
if not P["LATE"]: late_setup()
def fast_load():
    if P["FAST"] == 1: A("s_load_dwordx8 s[44:51], s[72:73], s92")
def fast_eval():
    if P["FAST"] != 1: return
    for i in range(44, 52, 2): A("s_xor_b64 s[%d:%d], s[%d:%d], s[70:71]" % (i, i + 1, i, i + 1))
    A(f"s_or_b64 s[44:45], s[44:45], s[46:47]\ns_or_b64 s[48:49], s[48:49], s[50:51]\ns_or_b64 s[44:45], s[44:45], s[48:49]\ns_cselect_b32 {sFAST}, 1, 0")
def early_wait(n, lbl):
    opts = sorted(set(a + b for a in (KX, 4) for b in ((0,) if TW else (0, 1))))
    for o in opts[:-1]: A(f"s_cmp_gt_u32 s93, {o}\ns_cbranch_scc1 {lbl}_{o}\ns_waitcnt vmcnt({n + o})\n{lbl}_{o}:")
    A(f"s_waitcnt vmcnt({n + opts[-1]})")
A(f"s_cmp_eq_u32 {sW}, 3\ns_cselect_b32 s93, {1 if P['FAST'] == 1 and not TW else 0}, 0")
if W2P: A(f"s_cmp_eq_u32 {sROLE}, 1\ns_cselect_b32 s80, 4, {KX}\ns_add_u32 s93, s80, s93")
else: A(f"s_min_u32 s80, {sROLE}, 1\ns_lshl2_add_u32 s93, s80, s93")
early_wait(4 + HEAD, "L_xw")
stamp("x")
for i in range(4): A("v_lshlrev_b32 v%d, 16, v%d\nv_and_b32 v%d, 0xffff0000, v%d" % (32 + 2 * i, 20 + i, 33 + 2 * i, 20 + i))
A("v_readfirstlane_b32 s80, v32")
for i in range(8): A("v_subrev_f32 v%d, s80, v%d" % (44 + i, 32 + i))
A("v_add_f32 v40, v44, v45\nv_mul_f32 v42, v44, v44\nv_add_f32 v41, v46, v47\nv_mul_f32 v43, v45, v45")
for i in range(2, 8):
    A("v_fmac_f32 v%d, v%d, v%d" % (42 + i % 2, 44 + i, 44 + i))
    if i >= 4: A("v_add_f32 v%d, v%d, v%d" % (40 + i % 2, 40 + i % 2, 44 + i))
A("v_add_f32 v40, v40, v41\nv_add_f32 v42, v42, v43")
for c in ("quad_perm:[1,0,3,2]", "quad_perm:[2,3,0,1]", "row_half_mirror", "row_mirror"):
    for r in (40, 42): A("v_add_f32_dpp v%d, v%d, v%d %s %s" % (r, r, r, c, DPP))
for sw in ("16", "32"):
    A("v_mov_b32 v41, v40\nv_mov_b32 v43, v42\nv_permlane%s_swap_b32 v40, v41\nv_permlane%s_swap_b32 v42, v43\nv_add_f32 v40, v40, v41\nv_add_f32 v42, v42, v43" % (sw, sw))
A("v_mul_f32 v40, 0x3b000000, v40\nv_mul_f32 v42, 0x3b000000, v42\nv_fma_f32 v42, -v40, v40, v42\nv_add_f32 v40, s80, v40\nv_max_f32 v42, 0, v42")
rbf2(40, 42, 40, 42, 41)
A("v_add_f32 v42, 0x3727c5ac, v42"); rbf(42)
A("v_sqrt_f32 v42, v42")
for i in range(8): A("v_sub_f32 v%d, v%d, v40" % (32 + i, 32 + i))
rbf(42)
A("v_rcp_f32 v42, v42")
for i in range(4): rbf2(32 + 2 * i, 33 + 2 * i, 32 + 2 * i, 33 + 2 * i, 44 + i)
for i in range(8): A("v_mul_f32 v%d, v%d, v42" % (32 + i, 32 + i))
for i in range(4): A("v_cvt_pk_bf16_f32 v%d, v%d, v%d" % (44 + i, 32 + 2 * i, 33 + 2 * i))
A("ds_write_b128 v24, v[44:47]")
stamp("ln")
k_role(KS[0], KS[1])
A("s_waitcnt lgkmcnt(0)")
A(f"""s_add_u32 {sE}, {sE}, 0x9d5b3701
s_and_b32 {sT[0]}, {sE}, 0xff
s_bfe_u32 {sT[1]}, {sE}, 0x80008
s_bfe_u32 {sT[2]}, {sE}, 0x80010
s_lshr_b32 {sT[3]}, {sE}, 24
v_lshlrev_b32 v7, 3, {vU}
v_lshrrev_b32 v141, v7, {sE}
""")
if TW: A(f"s_xor_b32 s70, s70, {sE}\nv_mov_b32 v19, s70\ns_mov_b64 exec, 1\nbuffer_store_dword v19, off, {WS}, s71 offset:{TB}\ns_mov_b64 exec, -1")
early_wait(KS[1] + TW, "L_wqw")
A("s_barrier")
stamp("wq")
for t in range(4): A("ds_read2_b64 %s, v25 offset0:%d offset1:%d" % (vr(32 + 4 * t, 4), 2 * t, 2 * t + 16))
def proj(addr, lds, voff, soff, lbl):
    for t in range(4):
        for h in range(2): A("ds_read_b64_tr_b16 %s, %s offset:%d" % (vr(48 + 4 * t + 2 * h, 2), addr, lds + t * 4096 + h * 2048))
    for t in range(4):
        A("s_waitcnt lgkmcnt(%d)" % (6 - 2 * t)); mfma(64, 48 + 4 * t, 32 + 4 * t, "0" if t == 0 else None)
    A(f"v_bfi_b32 {lbl}, {vFF}, v141, v64\nbuffer_store_dword {lbl}, {voff}, {WS}, {soff} offen" + ("" if P["FAST"] else " sc1"))
proj("v26", LWQ, "v29", "s84", "v190")
stamp("qpub")
RP = P["RP"] if P["FAST"] == 1 else 0
if RP: A(f"v_lshlrev_b32 v189, 2, v0\nv_add_u32 v189, {LRS}, v189\nds_write_b32 v189, v190")

T4 = P["TK"] == 4
if T4:
    TKB = 0x7d000
    A(f"s_and_b32 s44, {sE}, 0xffffff00\ns_lshl2_add_u32 s45, {sCO}, {sW}\ns_lshl_b32 s45, s45, 7\ns_add_u32 s45, s45, {TKB}")
    A(f"s_lshl_b32 s80, s2, 2\ns_add_u32 s80, s80, {sW}\ns_cmp_eq_u32 s80, 1021\ns_cbranch_scc0 L_notk\nv_mov_b32 v69, s44\nv_lshlrev_b32 v70, 7, {vL}\ns_mov_b32 s80, {TKB}\ns_mov_b32 exec_hi, 0")
    A(f"buffer_store_dword v69, v70, {WS}, s80 offen sc1\ns_mov_b64 exec, -1\nL_notk:")
elif P["TK"]:
    A(f"s_and_b32 s44, {sE}, 0xffffff00\ns_lshl_b32 s45, {sCO}, 1\ns_add_u32 s45, s45, {sW}\ns_lshl_b32 s45, s45, 7\ns_add_u32 s45, s45, {TKB - 256}")
    A(f"s_lshl_b32 s80, s2, 2\ns_add_u32 s80, s80, {sW}\ns_cmp_eq_u32 s80, 1021\ns_cbranch_scc0 L_notk\nv_mov_b32 v69, s44\nv_lshlrev_b32 v70, 7, {vL}\ns_mov_b64 exec, 0xffff")
    A(f"buffer_store_dword v69, v70, {WS}, 0 offen offset:{TKB} sc1\ns_mov_b64 exec, -1\nL_notk:")
thr[0] = P["THR"]
k_role(KS[1], KS[2])
if P["LATE"]: late_setup()
if W2P: A(f"s_cmp_eq_u32 {sROLE}, 1\ns_cbranch_scc0 L_now1w")
A("s_waitcnt vmcnt(%d)\nL_now1w:\ns_waitcnt lgkmcnt(0)\ns_barrier" % (KS[2] - 3 + TW))
A(f"s_cmp_eq_u32 {sROLE}, 1\ns_cbranch_scc0 L_noh")
proj("v146", 0, "v30", "s85", "v191")
A("L_noh:")
stamp("hpub")
if P["XL"]: A("ds_write_b128 v24, v[20:23]")
def qgather(r=32):
    for i in range(2): A(f"buffer_load_dwordx4 {vr(r + 4 * i, 4)}, v31, {WS}, s87 offen offset:{256 * i} {PLD}")
def hgather():
    for i in range(2): A(f"buffer_load_dwordx4 {vr(132 + 4 * i, 4)}, v12, {WS}, s90 offen offset:{64 * i} {PLD}")
k_role(KS[2], 16)
seq = []
Q2 = P["QG2"]
for a in range(3):
    if a == NV0:
        if P["FAST"] == 1: A(f"v_and_b32 v19, 31, {vL}\nv_lshlrev_b32 v19, 2, v19" if TW else f"v_and_b32 v19, 28, {vL}\nv_add_u32 v19, s92, v19")
        if P["FAST"] == 1 and not RP: look()
        qgather(); seq += ["q1"] * 2
        stamp("qg_iss")
    if Q2 and a == NV0 + Q2: qgather(40); seq += ["q2"] * 2
    if a + 1 == P["PRE"]:
        A(f"buffer_load_dword v189, v158, {WS}, s37 offen\nbuffer_load_dword v189, v160, {WS}, s36 offen"); seq += ["p"] * 2
    if a == 2 and not W2P: hgather(); seq += ["h"] * 2
    if W2P == 5 and a == NV0:
        A(f"s_cmp_eq_u32 {sROLE}, 2\ns_cbranch_scc0 L_now2l"); w2_dma(); A("L_now2l:")
    if a < P["VQ"]: kv_dma(V, VO, LV, a); seq += ["v"] * 4
V3E = P["V3E"]
if V3E: kv_dma(V, VO, LV, 3); seq += ["v"] * 4
stamp("v2_iss")
A("s_waitcnt vmcnt(%d)" % seq[::-1].index("q1"))
for a in range(3):
    for j in range(4): A("ds_read_b128 %s, v%d offset:%d" % (vr(64 + 16 * a + 4 * j, 4), 152 + j, 256 * a))
def fast_chk(rep):
    A(f"v_cmp_ne_u32 vcc, s70, v18\ns_cmp_lg_u64 vcc, 0\ns_cselect_b32 {sFAST}, 1, 0")
    if rep: A(f"s_cbranch_scc0 L_norep\nbuffer_store_dword v190, v29, {WS}, s84 offen sc1\ns_cmp_eq_u32 {sROLE}, 1\ns_cbranch_scc0 L_norep\nbuffer_store_dword v191, v30, {WS}, s85 offen sc1\nL_norep:")
if P["FAST"] == 1 and not RP: fast_chk(1)
if Q2:
    untag(32, 8, 48)
    A("s_cbranch_vccz L_qok\ns_mov_b64 exec, vcc\ns_waitcnt vmcnt(%d)" % seq[::-1].index("q2"))
    for e in range(8): A("v_mov_b32 v%d, v%d" % (32 + e, 40 + e))
A("s_branch L_qchk\nL_qagain:")
if RP:
    A(f"s_cmp_eq_u32 {sSPIN}, {RP}\ns_cbranch_scc0 L_qnr\ns_mov_b64 s[80:81], exec\ns_mov_b64 exec, -1\nv_lshlrev_b32 v48, 2, {vL}\nv_add_u32 v48, {LRS}, v48")
    A("ds_read2st64_b32 v[50:51], v48 offset1:1\nds_read2st64_b32 v[52:53], v48 offset0:2 offset1:3\ns_andn2_b32 s82, s84, 0xc0\ns_waitcnt lgkmcnt(0)")
    for j in range(4): A(f"buffer_store_dword v{50 + j}, v29, {WS}, s82 offen offset:{64 * j} sc1")
    A("s_mov_b64 exec, s[80:81]\nL_qnr:")
qgather()
A("s_waitcnt vmcnt(0)\nL_qchk:")
untag(32, 8, 48)
retry("L_qagain", "L_qok")
stamp("q_ok")
rscatter8(32)
A("v_cvt_pk_bf16_f32 v32, v32, v33\nds_write_b32 v156, v32\ns_waitcnt lgkmcnt(0)\ns_barrier")
QB = 168
for j in range(4): A("ds_read_b128 %s, v157 offset:%d" % (vr(QB + 4 * j, 4), 64 * j))
for j in range(4): A("ds_read_b128 %s, v%d offset:%d" % (vr(112 + 4 * j, 4) if j < 3 else "v[128:131]", 152 + j, 256 * 3))
for j in range(4):
    A("s_waitcnt lgkmcnt(%d)" % (7 - j))
    for a in range(3): mfma(48 + 4 * a, 64 + 16 * a + 4 * j, QB + 4 * j, "0" if j == 0 else None)
A("s_waitcnt lgkmcnt(0)")
for j in range(4): mfma(60, 112 + 4 * j if j < 3 else 128, QB + 4 * j, "0" if j == 0 else None)
stamp("qk")
if P["VQ"] == 2: kv_dma(V, VO, LV, 2)
F2 = P["F2"] and P["FAST"] == 1 and not V3E
assert F2 or not RP
if F2: look()
if W2P == 4: A(f"s_cmp_eq_u32 {sROLE}, 2\ns_cbranch_scc0 L_now2l"); hgather(); w2_dma(); A("L_now2l:")
if not V3E and P["VQ"] == 3: kv_dma(V, VO, LV, 3)
stamp("v3_iss")
SWP = P["SWP"]
def wo_tile(): tile_dma(WO, "v13", "s89", 1024, LWO, (0, 8, 4, 12))
def wo_dma(pos):
    if P["WOP"] != pos: return
    if SWP: A(f"s_cmp_eq_u32 {sROLE}, 2\ns_cbranch_scc0 L_sw1"); hgather(); w2_dma(); A("s_branch L_sw2\nL_sw1:")
    wo_tile(); A("L_sw2:")
wo_dma(0)
rbf2(48, 49, 48, 52, 53); rbf2(50, 51, 56, 60, 54)
for e in range(4): A("v_mul_f32 v%d, 0x3db504f3, v%d" % (48 + e, 48 + e))
rbf2(48, 49, 48, 49, 52); rbf2(50, 51, 50, 51, 53)
A("v_max_f32 v52, v48, v49\nv_max3_f32 v52, v52, v50, v51")
ROW = ("quad_perm:[1,0,3,2]", "quad_perm:[2,3,0,1]", "row_half_mirror", "row_mirror")
for c in ROW: A("v_max_f32_dpp v52, v52, v52 %s %s" % (c, DPP))
A("ds_write_b32 v9, v52\ns_mov_b32 s80, 0x3fb8aa3b\ns_waitcnt lgkmcnt(0)\ns_barrier\nds_read_b128 v[52:55], v8\ns_waitcnt lgkmcnt(0)")
A("v_max_f32 v52, v52, v53\nv_max3_f32 v56, v52, v54, v55\nv_mul_f32 v52, 0xbfb8aa3b, v56")
for e in range(4): A("v_fma_f32 v%d, v%d, s80, v52" % (48 + e, 48 + e))
for e in range(4): A("v_exp_f32 v%d, v%d" % (48 + e, 48 + e))
A("v_add_f32 v52, v48, v49\nv_cvt_pk_bf16_f32 v54, v48, v49\nv_add_f32 v53, v50, v51\nv_cvt_pk_bf16_f32 v55, v50, v51\nv_add_f32 v52, v52, v53\nds_write_b64 v10, v[54:55]")
for c in ROW: A("v_add_f32_dpp v52, v52, v52 %s %s" % (c, DPP))
A("ds_write_b32 v9, v52 offset:64")
if P["VQ"] == 2: kv_dma(V, VO, LV, 3)
wo_dma(1)
stamp("p_done")
def wreads(r, off):
    for mt in range(4):
        for h in range(2): A("ds_read_b64_tr_b16 %s, v%d offset:%d" % (vr(r + 4 * mt + 2 * h, 2), 148 + mt, off + h * 2048))
def wstage(a, b, addr):
    for mt in range(4): mfma(32 + 4 * mt, a + 4 * mt, b, "0")
    for mt in (0, 2): A("ds_write2_b32 %s, v%d, v%d offset0:%d offset1:%d" % (addr, 32 + 4 * mt, 36 + 4 * mt, 16 * mt, 16 * mt + 16))
def ffn_b(n=None):
    A(f"s_cmp_eq_u32 {sROLE}, 2\ns_cbranch_scc0 L_noffn")
    if n: A("s_waitcnt vmcnt(%d)" % n)
    wreads(80, LF - LWO)
    if not W2P: A("s_waitcnt vmcnt(%d)" % (8 if P["WOP"] == 2 else 12))
    A("s_branch L_hchk\nL_hagain:")
    hgather()
    A("s_waitcnt vmcnt(0)\nL_hchk:")
    untag(132, 8, 140)
    retry("L_hagain", "L_hok")
    rscatter8(132)
    A("v_max_f32 v132, 0, v132\nv_max_f32 v133, 0, v133\nv_cvt_pk_bf16_f32 v132, v132, v133")
    quad_b(136, 132)
    A("s_waitcnt lgkmcnt(0)")
    wstage(80, 136, "v161")
    A("L_noffn:")
def w2_late(pos):
    if W2P == pos:
        A(f"s_cmp_eq_u32 {sROLE}, 2\ns_cbranch_scc0 L_now2l")
        if SWP: wo_tile()
        else: hgather(); w2_dma()
        A("L_now2l:")
def r2_wait(n, lbl, on, tail=""):
    if on: role_wait(n, on, lbl, f"eq_u32 {sROLE}, 2", tail)
    else: A(f"s_waitcnt vmcnt({n}) {tail}")
if not W2P: ffn_b()
w2_late(1)
stamp("ffn")
wo_dma(2)
r2_wait(4 if W4 else 8, "L_w012", 6 if W2P in (1, 4) else 2 * SWP, "lgkmcnt(0)"); A("s_barrier")
stamp("v012")
A("ds_read_b128 v[60:63], v8 offset:64")
def vreads(t, r):
    A("ds_read_b128 %s, v11 offset:%d" % (vr(64 + 4 * t, 4), 64 * t))
    vreads2(t, r)
def vreads2(t, r):
    for mt in range(2):
        for h in range(2): A("ds_read_b64_tr_b16 %s, v%d offset:%d" % (vr(r + 4 * mt + 2 * h, 2), 27 + mt, t * 8192 + h * 4096))
R3 = (96, 104, 112)
vreads(0, 96); vreads(1, 104)
A(f"v_mov_b32 v58, {sE}\nv_mov_b32 v59, {sE}\ns_lshl_b32 s80, {sW}, 4\ns_waitcnt lgkmcnt(10)")
if STAMP: A(f"s_cmp_ge_u32 {sSPIN}, {RP}\ns_cselect_b32 {sFAST}, 1, 0\n" * (RP > 0) + f"v_writelane_b32 v127, {sFAST}, 57")
if F2: fast_chk(RP)
A("v_add_f32 v60, v60, v61\nv_add_f32 v62, v62, v63")
vreads(2, 112)
A("v_add_f32 v57, v60, v62\ns_lshl_b64 exec, 1, s80")
gstore(f"buffer_store_dwordx4 v[56:59], v160, {WS}, s36 offen", "L_ss")
A("s_mov_b64 exec, -1")
w2_late(2)
for t in range(6):
    A("s_waitcnt lgkmcnt(%d)" % (10 if t < 4 else (7, 2)[t - 4]))
    for mt in range(2): mfma(40 + 4 * mt, R3[t % 3] + 4 * mt, 64 + 4 * t, "0" if t == 0 else None)
    if t + 3 < 6: vreads(t + 3, R3[t % 3])
    if t == 3: A("ds_read_b128 v[88:91], v11 offset:384\nds_read_b128 v[92:95], v11 offset:448")
def sgather(r=184): A(f"buffer_load_dwordx4 {vr(r, 4)}, v159, {WS}, s46 offen {PLD}")
def reduce_pub(d, addr, off, soff):
    for i in range(4): A("ds_read_b128 %s, %s offset:%d" % (vr(d + 4 * i, 4), addr, off + 1024 * i))
    A("s_waitcnt lgkmcnt(2)")
    for e in range(0, 4, 2): A("v_pk_add_f32 %s, %s, %s" % (vr(d + e, 2), vr(d + e, 2), vr(d + 4 + e, 2)))
    A("s_waitcnt lgkmcnt(0)")
    for e in range(0, 4, 2): A("v_pk_add_f32 %s, %s, %s" % (vr(d + 8 + e, 2), vr(d + 8 + e, 2), vr(d + 12 + e, 2)))
    for e in range(0, 4, 2): A("v_pk_add_f32 %s, %s, %s" % (vr(d + e, 2), vr(d + e, 2), vr(d + 8 + e, 2)))
    tag(d)
    A(f"buffer_store_dwordx4 {vr(d, 4)}, v166, {WS}, {soff} offen {PST}")
w2_late(3)
sgather()
if P["GE"] == 1:
    A(f"s_lshl_b32 s80, {sW}, 2\ns_add_u32 s80, s80, {sROLE}\ns_cmp_eq_u32 s80, 6\ns_cbranch_scc0 L_nog")
    reduce_pub(168, "v165", 4096, "s40")
    A("s_waitcnt vmcnt(7)\ns_branch L_gdone\nL_nog:")
stamp("pv1")
r2_wait(2 if W4 else 6, "L_w3", 6 if W2P and not W4 else 0); A("L_gdone:\ns_barrier")
stamp("v3")
vreads2(6, 96); vreads2(7, 104)
for t in (6, 7):
    A("s_waitcnt lgkmcnt(%d)" % (4 * (7 - t)))
    for mt in range(2): mfma(40 + 4 * mt, R3[t - 6] + 4 * mt, 64 + 4 * t)
A(f"v_bfi_b32 v48, {vFF}, v142, v40\nv_bfi_b32 v49, {vFF}, v143, v44")
gstore(f"buffer_store_dwordx2 v[48:49], v158, {WS}, s37 offen", "L_os")
stamp("o_pub")
def ogather():
    for sh in range(2):
        for i in range(2): A(f"buffer_load_dwordx4 {vr(64 + 8 * sh + 4 * i, 4)}, v12, {WS}, s88 offen offset:{512 * sh + 64 * i} {PLD}")
SCHK = f"v_bitop3_b32 v186, v186, v187, {sE} bitop3:0x7e\nv_cmp_ne_u32 vcc, 0, v186"
if SWP and P["FB"]: ffn_b(7)
if W4:
    wo_tile(); ffn_b()
    if P["OW"]: A("s_waitcnt vmcnt(4)")
if P["SG2"]:
    sgather(56); ogather()
    if SWP and not P["FB"]: ffn_b(12)
    if P["GE"] == 2:
        A(f"s_cmp_eq_u32 {sROLE}, 2\ns_cbranch_scc0 L_nog\ns_cmp_eq_u32 {sW}, 1\ns_waitcnt lgkmcnt(0)\ns_barrier\ns_cbranch_scc0 L_nog")
        reduce_pub(168, "v165", 4096, "s40")
        A("L_nog:")
    A("s_waitcnt vmcnt(%d)" % (5 if W4 else 6))
    stamp("wo_land")
    if W2P and not SWP and not W4: ffn_b()
    A(SCHK)
    wreads(96, 0)
    A("s_cbranch_vccz L_sok2\ns_mov_b64 exec, vcc\ns_waitcnt vmcnt(4)")
    for e in range(4): A("v_mov_b32 v%d, v%d" % (184 + e, 56 + e))
    A(SCHK + "\ns_cbranch_vccz L_sok1\ns_mov_b64 exec, vcc\nL_sagain:")
    sgather()
    A("s_waitcnt vmcnt(0)\n" + SCHK)
    retry("L_sagain", "L_sok")
    ogather()
    A("L_sok1:\ns_mov_b64 exec, -1\nL_sok2:")
else:
    ogather()
    if SWP and not P["FB"]: ffn_b(11)
    A("s_waitcnt vmcnt(5)")
    stamp("wo_land")
    if W2P and not SWP: ffn_b()
    wreads(96, 0)
    A("s_branch L_schk\nL_sagain:")
    sgather()
    A("s_waitcnt vmcnt(0)\nL_schk:\n" + SCHK)
    retry("L_sagain", "L_sok")
A(f"v_max_f32_dpp v60, v184, v184 quad_perm:[1,0,3,2] {DPP}")
allred_g("v_max_f32", 60, 61)
A("v_sub_f32 v60, v184, v60\nv_mul_f32 v60, 0x3fb8aa3b, v60\nv_exp_f32 v60, v60\nv_mul_f32 v61, v60, v185")
A(f"v_add_f32_dpp v61, v61, v61 quad_perm:[1,0,3,2] {DPP}")
allred_g("v_add_f32", 61, 62)
A("v_rcp_f32 v61, v61\nv_mul_f32 v60, v60, v61")
A(f"v_mov_b32_dpp v62, v60 quad_perm:[0,0,0,0] {DPP}\nv_mov_b32_dpp v63, v60 quad_perm:[1,1,1,1] {DPP}")
stamp("st_ok")
A("s_branch L_ow\nL_oagain:")
ogather()
A("L_ow:\ns_waitcnt vmcnt(0)")
untag(64, 16, 61)
retry("L_oagain", "L_ook")
stamp("o_ok")
def ticket():
    A(f"v_mov_b32 v60, 1\ns_mov_b64 exec, 1\nbuffer_atomic_add v60, v160, {WS}, s45 offen sc0 sc1\ns_mov_b64 exec, -1")
if P["TK"] == 3:
    A(f"s_cmp_ge_u32 {sW}, 2\ns_cbranch_scc0 L_tk3"); ticket(); A("L_tk3:")
for e in range(0, 8, 2): A("v_pk_mul_f32 %s, %s, v[62:63] op_sel_hi:[1,0]" % (vr(64 + e, 2), vr(64 + e, 2)))
for e in range(0, 8, 2): A("v_pk_fma_f32 %s, %s, v[62:63], %s op_sel:[0,1,0]" % (vr(64 + e, 2), vr(72 + e, 2), vr(64 + e, 2)))
rscatter8(64, True)
A("v_cvt_pk_bf16_f32 v64, v64, v65")
quad_b(68, 64)
A("s_waitcnt lgkmcnt(0)")
wstage(96, 68, "v147")
if not P["GE"]: A(f"v_add_u32 v165, {sW4K}, v165\ns_cmp_eq_u32 {sW}, 0\ns_cselect_b32 s47, s47, s40")
if P["TK"] == 2:
    A(f"s_cmp_ge_u32 {sW}, 2\ns_cbranch_scc0 L_tk2"); ticket(); A("L_tk2:")
A(f"s_cmp_ge_u32 {sW}, 2\ns_waitcnt lgkmcnt(0)\ns_barrier")
if T4: ticket()
A("s_cbranch_scc1 L_final")
LX = "L_final" if T4 else "L_done"
if P["GE"]: A(f"s_cmp_eq_u32 {sW}, 0\ns_cbranch_scc0 {LX}")
else: A(f"s_lshl_b32 s80, {sW}, 1\ns_andn2_b32 s80, s80, {sROLE}\ns_cbranch_scc1 {LX}")
reduce_pub(32, "v165", 0, "s47")
stamp("s_pub")
A("s_waitcnt vmcnt(1)\ns_branch L_tkr" if T4 else "s_branch L_done")
A("L_final:")
if P["TK"]:
    if P["TK"] >= 2: A("s_branch L_tkw")
    A("L_tkagain:"); ticket()
    A(f"""L_tkw:
s_waitcnt vmcnt(0)
L_tkr:
v_readfirstlane_b32 s41, v60
s_xor_b32 s41, s41, s44
s_cmp_lt_u32 s41, 32
s_cbranch_scc1 L_tkok
s_add_u32 {sSPIN}, {sSPIN}, 1
s_cmp_lt_u32 {sSPIN}, {P["SPIN"]}
s_cbranch_scc1 L_tkagain
s_branch L_done
L_tkok:""")
    if T4: A("s_cmp_eq_u32 s41, 31\ns_cbranch_scc0 L_done")
    else: A(f"""s_sub_u32 s41, s41, 28
s_cbranch_scc1 L_done
s_lshl_b32 s41, s41, 4
s_bfe_u32 s80, s45, 0x40007
s_add_u32 s41, s41, s80
s_mul_i32 s42, s41, 6144
s_add_u32 s42, s42, {SP}
s_add_u32 s43, s42, 4096
s_lshl_b32 s83, s41, 6""")
    stamp("tk")
    if STAMP: A(f"s_mov_b32 {sSPIN}, 100")
else: A(f"s_cmp_eq_u32 {sW}, 2\ns_cbranch_scc0 L_done\ns_cmp_lt_u32 s41, 64\ns_cbranch_scc0 L_done")
if T4: pass
elif P["XL"]: A(f"s_lshr_b32 s80, s41, 4\ns_lshl_b32 s80, s80, 6\ns_add_u32 s80, s80, s83\ns_add_u32 s80, s80, {LXN}\nv_add_u32 v62, s80, v167")
else: A(f"buffer_load_ushort v60, v167, {X}, s83 offen")
def pka(d, a, b, n):
    for e in range(0, n, 2): A("v_pk_add_f32 %s, %s, %s" % (vr(d + e, 2), vr(a + e, 2), vr(b + e, 2)))
def ggather(l):
    A(f"buffer_load_dwordx4 v[48:51], v164, {WS}, s43 offen {PLD}")
    for e in range(4): A("v_mov_b32 v%d, %s" % (52 + e, sT[e]))
    A(f"s_mov_b32 s80, exec_hi\ns_and_b32 exec_hi, exec_hi, 0xffff\ns_cbranch_execz {l}\nbuffer_load_dwordx4 v[52:55], v164, {WS}, s43 offen offset:1024 {PLD}\n{l}:\ns_mov_b32 exec_hi, s80")
def fgather():
    for i in range(4): A(f"buffer_load_dwordx4 {vr(32 + 4 * i, 4)}, v164, {WS}, s42 offen offset:{1024 * i} {PLD}")
def red8(r):
    for e in range(2): A("v_permlane32_swap_b32 v%d, v%d" % (r + e, r + 2 + e))
    pka(r, r, r + 2, 2)
    A("v_permlane16_swap_b32 v%d, v%d\nv_add_f32 v%d, v%d, v%d\nv_add_f32_dpp v%d, v%d, v%d row_ror:8 %s" % (r, r + 1, r, r, r + 1, r, r, r, DPP))
    rbf(r)
def final4():
    def gg(l):
        for i in range(3): A(f"buffer_load_dwordx4 {vr(64 + 4 * i, 4)}, v164, {WS}, s43 offen offset:{512 * i} {PLD}")
        for e in range(4): A("v_mov_b32 v%d, %s" % (76 + e, sT[e]))
        A(f"s_mov_b32 s80, exec_hi\ns_mov_b32 exec_hi, 0\ns_cbranch_execz {l}\nbuffer_load_dwordx4 v[76:79], v164, {WS}, s43 offen offset:1536 {PLD}\n{l}:\ns_mov_b32 exec_hi, s80")
    def fg():
        for i in range(8): A(f"buffer_load_dwordx4 {vr(80 + 4 * i, 4)}, v164, {WS}, s42 offen offset:{512 * i} {PLD}")
    def red4(r):
        for e in range(2): A("v_permlane32_swap_b32 v%d, v%d" % (r + e, r + 2 + e))
        pka(r, r, r + 2, 2)
        A("v_permlane16_swap_b32 v%d, v%d\nv_add_f32 v%d, v%d, v%d" % (r, r + 1, r, r, r + 1)); rbf(r)
    gg("L_gs1"); fg()
    A("ds_read_u16 v60, v163\ns_waitcnt vmcnt(8) lgkmcnt(0)\ns_branch L_gchk\nL_gagain:")
    gg("L_gs2")
    A("s_waitcnt vmcnt(0)\nL_gchk:")
    untag(64, 16, 61); retry("L_gagain", "L_gok")
    pka(64, 64, 72, 8); pka(64, 64, 68, 4)
    A("v_lshlrev_b32 v60, 16, v60"); red4(64)
    A("v_mul_f32 v65, 0xbfb8aa3b, v64\nv_exp_f32 v65, v65\nv_add_f32 v65, 1.0, v65\nv_rcp_f32 v65, v65\nv_mul_f32 v64, v64, v65"); rbf(64)
    A("s_branch L_fchk\nL_fagain:"); fg()
    A("L_fchk:\ns_waitcnt vmcnt(4)")
    for e in range(16): A("v_xor_b32 v%d, %s, v%d" % (80 + e, sT[e % 4], 80 + e))
    for e in range(0, 16, 2): A("v_or3_b32 v62, v%d, v%d, %s" % (80 + e, 81 + e, "v62" if e else "0"))
    pka(32, 80, 88, 8); pka(32, 32, 36, 4)
    A("s_waitcnt vmcnt(0)")
    for e in range(16): A("v_xor_b32 v%d, %s, v%d" % (96 + e, sT[e % 4], 96 + e))
    for e in range(0, 16, 2): A("v_or3_b32 v62, v%d, v%d, v62" % (96 + e, 97 + e))
    A(f"v_and_b32 v62, v62, {vFF}\nv_cmp_ne_u32 vcc, 0, v62")
    retry("L_fagain", "L_fok")
    stamp("f_ok")
    pka(96, 96, 104, 8); pka(96, 96, 100, 4); pka(32, 32, 96, 4)
    red4(32)
    A("v_mul_f32 v32, v32, v64"); rbf(32)
    A("v_add_f32 v32, v60, v32\nv_cvt_pk_bf16_f32 v32, v32, v32")
    A(f"buffer_store_short v32, v167, {OUT}, s83 offen")
    A(f"s_cmp_eq_u32 s83, 0\ns_cbranch_scc0 L_done\nv_mov_b32 v33, {sE}\ns_mov_b64 exec, 1\nbuffer_store_dword v33, v160, {WS}, 0 offen")
def final1():
    ggather("L_gs1")
    if P["FIN"] == 2: A("s_waitcnt vmcnt(0)")
    fgather()
    if P["XL"]: A("ds_read_u16 v60, v62")
    A("s_waitcnt vmcnt(4) lgkmcnt(0)\ns_branch L_gchk\nL_gagain:")
    ggather("L_gs2")
    A("s_waitcnt vmcnt(0)\nL_gchk:")
    untag(48, 8, 61)
    retry("L_gagain", "L_gok")
    pka(48, 48, 52, 4)
    A("v_lshlrev_b32 v60, 16, v60")
    red8(48)
    A("v_mul_f32 v49, 0xbfb8aa3b, v48\nv_exp_f32 v49, v49\nv_add_f32 v49, 1.0, v49\nv_rcp_f32 v49, v49\nv_mul_f32 v48, v48, v49")
    rbf(48)
    A("s_branch L_fchk\nL_fagain:")
    fgather()
    A("L_fchk:\ns_waitcnt vmcnt(0)")
    untag(32, 16, 61)
    retry("L_fagain", "L_fok")
    stamp("f_ok")
    pka(32, 32, 40, 8); pka(32, 32, 36, 4)
    red8(32)
    A("v_mul_f32 v32, v32, v48"); rbf(32)
    A("v_add_f32 v32, v60, v32\nv_cvt_pk_bf16_f32 v32, v32, v32")
    A(f"s_mov_b32 exec_lo, 0x00ff00ff\ns_mov_b32 exec_hi, 0x00ff00ff\nbuffer_store_short v32, v167, {OUT}, s83 offen")
    A(f"s_cmp_eq_u32 s41, 0\ns_cbranch_scc0 L_done\nv_mov_b32 v33, {sE}\ns_mov_b64 exec, 1\nbuffer_store_dword v33, v160, {WS}, 0 offen")
final4() if T4 else final1()
A("L_done:")
if P["DIAG"]:
    stamp("end")
    if P["DG"] >= 0: A(f"s_cmp_eq_u32 {sHKV}, {P['DG']}\ns_cselect_b32 s94, s94, s96")
    if P["DIAG"] == "xcc": A("s_and_b32 s94, s70, 7\ns_mul_i32 s94, s94, 100\ns_cmp_eq_u32 s2, 3\ns_cselect_b32 s94, s94, 0\ns_add_u32 s94, s94, s96")
    A("s_sub_u32 s94, s94, s96\ns_lshl_b32 s94, s94, 2\ns_add_u32 s94, s94, 4000\nL_diag:\ns_memrealtime s[98:99]\ns_waitcnt lgkmcnt(0)\ns_sub_u32 s98, s98, s96\ns_cmp_lt_u32 s98, s94\ns_cbranch_scc1 L_diag")
if STAMP:
    A("s_mov_b64 exec, -1")
    stamp("end")
    A(f"v_writelane_b32 v127, {sSPIN}, 61\nv_writelane_b32 v127, {sFAST}, 59")
    A(f"s_lshl_b32 s80, s2, 10\ns_add_u32 s80, s80, {STP}\nv_lshlrev_b32 v7, 2, v0\nbuffer_store_dword v127, v7, {WS}, s80 offen")
A("L_end:\ns_endpgm\n.fill 9472 - (. - %s), 1, 0" % KN if not STAMP else "L_end:\ns_endpgm\n.fill 2048, 1, 0")
if P["TOT"]: A(".fill %d - (. - %s), 1, 0" % (P["TOT"] - P["PAD"], KN))
hdr = open("recurrent_scan__sliding_block_cached__dense_activation_relu__decode.s.ref").read().split("; Override launch")[0]
print(hdr + "; @launch grid=(256,1,1) block=(256,1,1) lds=%d" % LDS_BYTES)
print('.amdgcn_target "amdgcn-amd-amdhsa--gfx950"\n.text\n' + (".p2align %d\n" % P["AL"] if P["AL"] else "") + (".fill %d, 1, 0\n" % P["PAD"] if P["PAD"] else "") + '.globl %s\n.p2align 8\n.type %s,@function\n%s:' % (KN, KN, KN))
print(A.text())
print('.section .rodata,"a"\n' + (".fill %d, 1, 0\n" % -P["RPAD"] if P["RPAD"] < 0 else "") + '.p2align 6\n.amdhsa_kernel %s\n  .amdhsa_next_free_vgpr 192\n  .amdhsa_next_free_sgpr 102\n  .amdhsa_accum_offset 192\n  .amdhsa_group_segment_fixed_size 0\n  .amdhsa_kernarg_size 88\n  .amdhsa_user_sgpr_count 2\n  .amdhsa_user_sgpr_kernarg_segment_ptr 1\n  .amdhsa_system_sgpr_workgroup_id_x 1\n.end_amdhsa_kernel' % KN)
if P["RPAD"] > 0: print(".fill %d, 1, 0" % P["RPAD"])
```

```python
import sys
from asmlib import Asm
KN = "recurrent_scan__sliding_block_cached__dense_activation_relu__decode_kernel"
P = dict(US=1, JP=0, RPAD=0, TOT=0, AL=0, PAD=0, OW=1, TW=1, RP=3, DG=-1, THR=0, VQ=3, W2P=1, F2=1, NF=7, FB=1, SWP=1, RS=1, KX=2, STS="", WOP=1, ROT=20992, FAST=1, X1=2, XO=2, XL=1, SG2=1, FIN=1, TLB=0, FLP=2, V3E=0, LATE=1, PRE=0, TK=1, GE=1, QG2=2, KS="4+5+10", NK0=2, NV0=0, PKV="nt", PW="nt", STAMP=0, SPIN=200000, WARM=2, QX=0, PSTG="sc1", FINE=0, SLEEP=0, PST="sc1", PLD="sc1", K2E=1, DIAG="")
for a in sys.argv[1:]:
    k, v = a.split("=")
    P[k] = type(P[k])(v) if v != "def" else ""
if P["W2P"] and P["GE"] == 1: P["GE"] = 0
W4 = P["WOP"] == 4
if W4: P["SWP"] = 0; P["W2P"] = max(P["W2P"], 4)
PSTG = P["PSTG"]
PST, PLD = P["PST"].replace("_", " "), P["PLD"].replace("_", " ")
NK0, NV0, PKV, PW, STAMP = P["NK0"], P["NV0"], P["PKV"], P["PW"], P["STAMP"]
LV, LK, LF, LS = 0, 65536, 131072, 147456
LWQ, LWO = LV, LK + 49152
LXN = LS; LQ = LXN + 4352; LMX = LQ + 1280; LL = LMX + 64; LP = LL + 64; LRS = LP + 2304 + 128; LRG = LRS + 4096
LDS_BYTES = LRG + 4096
assert LRS % 256 == 0 and LDS_BYTES <= 163840
QP, HP, ST, OP, SP, WSZ = 0x1000, 0x41000, 0x79000, 0x80000, 0x100000, 0x160000
STP = 0x200000
TKB = 0x800
DPP = "row_mask:0xf bank_mask:0xf"
A = Asm()
nst = [0]
def stamp(name):
    if P["DIAG"] == name: A("s_memrealtime s[94:95]\ns_waitcnt lgkmcnt(0)")
    if not STAMP or (P["STS"] and name not in P["STS"].split("+")): return
    i = nst[0]; nst[0] += 1
    A("s_memrealtime s[98:99]\ns_waitcnt lgkmcnt(0)\nv_writelane_b32 v127, s98, %d ; stamp %s" % (i, name))
    print("stamp", i, name, file=sys.stderr)
X, WQ, K, V, WO, WF, WS, OUT = ("s[%d:%d]" % (i, i + 3) for i in range(4, 36, 4))
sW, sHKV, sLO, sHI, sROLE, sE = "s52", "s53", "s55", "s56", "s57", "s60"
sT = ["s61", "s62", "s63", "s64"]
sKV, sW4K = "s58", "s59"
sM0, sM1, sM2, sM3, sM01 = "s[66:67]", "s[68:69]", "s[70:71]", "s[72:73]", "s[74:75]"
sF0, sF1 = "s76", "s77"
sSPIN = "s78"
sKS, sCO, sC2 = "s66", "s67", "s68"
vL, vN, vG, vU, vHB, vFF = "v1", "v2", "v3", "v4", "v5", "v6"
def vr(a, n): return "v[%d:%d]" % (a, a + n - 1)

thr = [0]
def tile_dma(srd, voff, sbase, pitch, lds, rows=(0, 8, 16, 24)):
    A("s_add_u32 m0, %s, %d" % (sW4K, lds))
    for i in range(4):
        if i: A("s_add_i32 %s, %s, %d" % (sbase, sbase, (rows[i] - rows[i - 1]) * pitch - 1024))
        A("buffer_load_dwordx4 %s, %s, %s offen offset:%d %s lds" % (voff, srd, sbase, 1024 * i, PW))
def kv_dma(srd, voffs, lds, a, i0=0, i1=4):
    if i0 == i1: return
    if srd == K:
        if i0 == 0:
            d = a ^ (a - 1)
            for v in voffs: A("v_xor_b32 %s, %d, %s" % (v, d << 14 | d << 6, v))
        A("s_add_u32 m0, %s, %d" % (sW4K, lds + a * 16384))
        for i in range(i0, i1):
            if thr[0]: A("s_waitcnt vmcnt(%d)" % (thr[0] - 1))
            A("global_load_lds_dwordx4 %s, s[38:39] offset:%d %s" % (voffs[i], 1024 * i, PKV))
        return
    A("s_add_u32 m0, %s, %d\ns_xor_b32 s79, %s, %d" % (sW4K, lds + a * 16384, sKV, a * 16384))
    for i in range(i0, i1):
        if thr[0]: A("s_waitcnt vmcnt(%d)" % (thr[0] - 1))
        A("buffer_load_dwordx4 %s, %s, s79 offen offset:%d %s lds" % (voffs[i % len(voffs)], srd, 1024 * i, PKV))
def tag(r):
    for e in range(4): A("v_bfi_b32 v%d, %s, %s, v%d" % (r + e, vFF, sT[e], r + e))
def untag(r, n, t):
    for e in range(n): A("v_xor_b32 v%d, %s, v%d" % (r + e, sT[e % 4], r + e))
    A("v_or3_b32 v%d, v%d, v%d, v%d" % (t, r, r + 1, r + 2))
    i = 3
    while i + 1 < n:
        A("v_or3_b32 v%d, v%d, v%d, v%d" % (t, t, r + i, r + i + 1)); i += 2
    A("v_bitop3_b32 v%d, v%d, v%d, %s bitop3:0xa8" % (t, t, r + i, vFF))
    A("v_cmp_ne_u32 vcc, 0, v%d" % t)
def untag16(r, t):
    if not P["US"]: A("s_waitcnt vmcnt(0)"); untag(r, 16, t); return
    for i in range(4):
        if i != 1: A("s_waitcnt vmcnt(%d)" % (2, 0, 1, 0)[i])
        q = r + 4 * i
        for e in range(4): A("v_xor_b32 v%d, %s, v%d" % (q + e, sT[e], q + e))
        if i == 0: A("v_or3_b32 v%d, v%d, v%d, v%d" % (t, q, q + 1, q + 2))
        else: A("v_or3_b32 v%d, v%d, v%d, v%d\nv_or3_b32 v%d, v%d, v%d, v%d" % (t, t, q - 1, q, t, t, q + 1, q + 2))
    A("v_bitop3_b32 v%d, v%d, v%d, %s bitop3:0xa8\nv_cmp_ne_u32 vcc, 0, v%d" % (t, t, r + 15, vFF, t))
def retry(lbl_again, lbl_ok):
    A("s_cbranch_vccz %s\ns_mov_b64 exec, vcc\n" % lbl_ok + ("s_sleep %d\n" % P["SLEEP"] if P["SLEEP"] else "") + "s_add_u32 %s, %s, 1\ns_cmp_lt_u32 %s, %d\ns_cbranch_scc1 %s\n%s:" % (sSPIN, sSPIN, sSPIN, P["SPIN"], lbl_again, lbl_ok))
    A("s_mov_b64 exec, -1")
def rscatter8(r, alt=False):
    for e in range(4): A("v_permlane32_swap_b32 v%d, v%d" % (r + e, r + 4 + e))
    for e in range(0, 4, 2): A("v_pk_add_f32 %s, %s, %s" % (vr(r + e, 2), vr(r + e, 2), vr(r + 4 + e, 2)))
    pr = ((0, 1), (2, 3)) if alt else ((0, 2), (1, 3))
    for a, b in pr: A("v_permlane16_swap_b32 v%d, v%d" % (r + a, r + b))
    for e, (a, b) in enumerate(pr): A("v_add_f32 v%d, v%d, v%d" % (r + e, r + a, r + b))
def allred_g(op, r, t):
    A("v_mov_b32 v%d, v%d\nv_permlane16_swap_b32 v%d, v%d\n%s v%d, v%d, v%d" % (t, r, r, t, op, r, r, t))
    A("v_mov_b32 v%d, v%d\nv_permlane32_swap_b32 v%d, v%d\n%s v%d, v%d, v%d" % (t, r, r, t, op, r, r, t))
def allred64(r, t):
    for c in ("quad_perm:[1,0,3,2]", "quad_perm:[2,3,0,1]", "row_half_mirror", "row_mirror"):
        A("v_add_f32_dpp v%d, v%d, v%d %s %s" % (r, r, r, c, DPP))
    allred_g("v_add_f32", r, t)
def rbf(r):
    A("v_cvt_pk_bf16_f32 v%d, v%d, v%d\nv_and_b32 v%d, 0xffff0000, v%d" % (r, r, r, r, r))
def rbf2(d0, d1, a, b, t):
    A("v_cvt_pk_bf16_f32 v%d, v%d, v%d\nv_lshlrev_b32 v%d, 16, v%d\nv_and_b32 v%d, 0xffff0000, v%d" % (t, a, b, d0, t, d1, t))
def quad_b(dst, src):
    for i, r in enumerate((0, 1, 2, 3)):
        A("v_mov_b32_dpp v%d, v%d quad_perm:[%d,%d,%d,%d] %s" % (dst + i, src, r, r, r, r, DPP))
def mfma(d, a, b, c=None):
    A("v_mfma_f32_16x16x32_bf16 %s, %s, %s, %s" % (vr(d, 4), vr(b, 4), vr(a, 4), vr(d, 4) if c is None else c))

sFAST = "s69"
def gstore(ins, lbl):
    if P["FAST"] == 0: A(ins + " sc1"); return
    if P["FAST"] == 2: A(ins); return
    A(f"s_cmp_eq_u32 {sFAST}, 0\ns_cbranch_scc1 {lbl}_f\n{ins} sc1\ns_branch {lbl}_e\n{lbl}_f:\n{ins}\n{lbl}_e:")
def role_wait(n, extra, lbl, role, tail=""):
    A(f"s_cmp_{role}\ns_cbranch_scc1 {lbl}\ns_waitcnt vmcnt({n})\n{lbl}:\ns_waitcnt vmcnt({n + extra}) {tail}")
KO = ["v14", "v15", "v16", "v17"]; VO = ["v144", "v145"]
KS = [int(x) for x in P["KS"].split("+")] + [16]
HEAD = KS[0]
def k_issue(p0, p1):
    while p0 < p1:
        a = p0 // 4; e = min(p1, 4 * a + 4)
        kv_dma(K, KO, LK, a, p0 - 4 * a, e - 4 * a); p0 = e
nk = [0]
assert KS[2] + P["KX"] <= 16
W2P = P["W2P"]; KX = P["KX"] if W2P else 0
def k_role(p0, p1):
    if not KX: k_issue(p0, p1); return
    nk[0] += 1; l = "L_k%d" % nk[0]
    A(f"s_cmp_eq_u32 {sROLE}, 1\ns_cbranch_scc1 {l}a"); k_issue(min(p0 + KX, 16), min(p1 + KX, 16))
    A(f"s_branch {l}b\n{l}a:"); k_issue(p0, p1); A(f"{l}b:")
if STAMP or P["DIAG"]: A("s_memrealtime s[96:97]")
A(f"""
s_load_dwordx16 s[36:51], s[0:1], 0
s_load_dwordx4 s[72:75], s[0:1], 72
s_getpc_b64 s[80:81]
v_mad_u64_u32 v[162:163], vcc, v0, 36, s[80:81]
s_cmpk_ge_u32 s2, 256
s_cbranch_scc1 L_end
global_load_dword v162, v[162:163], off
v_readfirstlane_b32 {sW}, v0
v_lshrrev_b32 v9, 3, v0
v_lshlrev_b32 v8, 4, v0                 ; x offset
v_bitop3_b32 v10, v9, v0, 7 bitop3:0x28
s_and_b32 {sHKV}, s2, 7
s_lshr_b32 {sHI}, s2, 5
s_lshl3_add_u32 s81, {sHKV}, {sHI}
s_and_b32 s80, s2, 24
s_lshl_b32 s80, s80, 10
s_add_u32 s81, s81, s80
s_lshl_b32 s81, s81, 7
v_lshl_add_u32 v11, v9, 9, v10
s_bfm_b32 s82, 8, 10
v_lshl_add_u32 v11, v11, 4, s81
s_lshl_b32 m0, {sW}, 6
v_add_u32 v12, s82, v11
v_add_u32 v13, s82, v12
v_add_u32 v18, s82, v13
s_and_b32 {sKV}, s2, 31
s_lshl_b32 {sKV}, {sKV}, 5
s_add_u32 {sKV}, {sKV}, {sHI}
s_addk_i32 {sKV}, 24
s_lshl_b32 {sKV}, {sKV}, 16
s_lshl1_add_u32 {sKV}, s80, {sKV}
s_movk_i32 s82, 3072
v_add_u32 v14, {sKV}, v8
v_xad_u32 v15, v14, 16, s82
v_xad_u32 v16, v15, 48, s82
s_waitcnt lgkmcnt(0)
global_load_dwordx4 v[20:23], v8, s[36:37]
s_load_dword {sE}, s[74:75], 0
global_load_lds_dwordx4 v11, s[42:43] {PW}
global_load_lds_dwordx4 v12, s[42:43] offset:1024 {PW}
global_load_lds_dwordx4 v13, s[42:43] offset:2048 {PW}
global_load_lds_dwordx4 v18, s[42:43] offset:3072 {PW}
s_bitset1_b32 m0, 16
v_xad_u32 v17, v16, 16, s82
global_load_lds_dwordx4 v14, s[38:39] {PKV}
global_load_lds_dwordx4 v15, s[38:39] offset:1024 {PKV}
global_load_lds_dwordx4 v16, s[38:39] offset:2048 {PKV}
global_load_lds_dwordx4 v17, s[38:39] offset:3072 {PKV}
L_head_end:
s_load_dwordx2 s[32:33], s[0:1], 64
s_lshl_b32 {sW4K}, {sW}, 6
s_lshr_b32 {sW}, {sW}, 6
s_bfe_u32 {sLO}, s2, 0x20003
s_getreg_b32 s70, hwreg(HW_REG_XCC_ID, 0, 4)
s_lshl_b32 s92, {sHKV}, 5
s_lshr_b32 s93, s2, 3
s_add_u32 s93, s93, s92""")
TW = P["TW"]; TB = 0x400
if TW: A("s_lshl_b32 s71, s93, 2\ns_lshl_b32 s92, s92, 2")
else:
    A(f"s_or_b32 s70, s70, 0x80\nv_mov_b32 v19, s70\nv_mov_b32 v18, s93\ns_cmp_eq_u32 {sW}, 3\ns_cbranch_scc0 L_nox")
    if P["FAST"] == 1: A("s_mov_b64 exec, 1\nglobal_store_byte v18, v19, s[72:73]\ns_mov_b64 exec, -1")
def look(): A(f"buffer_load_dword v18, v19, {WS}, s92 offen offset:{TB} sc1" if TW else "global_load_dword v18, v19, s[72:73] sc1")
A(f"""L_nox:
v_lshlrev_b32 v10, 4, v10
s_mov_b32 s26, 1835008
s_mov_b32 s27, 0x20000
s_mov_b32 {sROLE}, 0
s_cmp_gt_u32 {sHKV}, {P['NF']}
s_subb_u32 s91, {sHKV}, 0
s_and_b32 {sF0}, {sHI}, 3
s_lshl2_add_u32 {sF0}, s91, {sF0}
s_xor_b32 {sF0}, {sF0}, {P['X1']}
s_xor_b32 {sCO}, {sHI}, {P['XO']}
s_bfe_u32 {sC2}, s2, 0x30003
s_bfe_u32 {sF1}, s2, 0x10006
s_lshl1_add_u32 {sF1}, s91, {sF1}
s_lshl2_add_u32 s90, {sF1}, {sW}        ; 4*rb+w
s_cmp_eq_u32 {sHKV}, {P['NF']}
s_cbranch_scc1 L_now3
s_cmp_lt_u32 s2, 128
s_cbranch_scc{P['RS']} L_now1
s_mov_b32 {sROLE}, 1
s_mov_b64 s[24:25], s[48:49]
v_mul_u32_u24 v12, 3584, v9
s_mul_i32 s83, {sLO}, 3584
s_add_u32 s83, s83, {sF0}
s_lshl_b32 s83, s83, 7                  ; w1 base
v_add_u32 v12, v12, v10                 ; w1 voffset
""")
tile_dma(WF, "v12", "s83", 3584, LF, (0, 32, 64, 96))
A(f"""s_branch L_now2
L_now1:
s_mov_b32 {sROLE}, 2
s_mov_b64 s[24:25], s[50:51]
v_bfe_u32 v7, v9, 2, 1
v_and_b32 v13, 2, v9
v_add_u32 v13, v13, v7
v_and_b32 v18, 1, v9
v_lshl_add_u32 v13, v13, 1, v18
s_lshl_b32 s91, s90, 8
s_add_u32 s91, s91, {sC2}
s_lshl_b32 s91, s91, 7                  ; w2 base
v_lshl_add_u32 v188, v13, 10, v10
""")
def w2_dma(): tile_dma(WF, "v188", "s91", 1024, LF, (0, 16, 8, 24))
if not W2P: w2_dma()
A("L_now3:")
k_issue(4, 4 + KX)
A("L_now2:")
NS = 0
A(f"""
v_and_b32 {vL}, 63, v0
s_add_u32 {sKV}, {sKV}, {sW4K}
v_lshrrev_b32 {vG}, 4, {vL}
s_mov_b64 s[4:5], s[36:37]
s_mov_b32 s6, 4096
s_mov_b32 s7, 0x20000
""")
k_role(4, HEAD)
if STAMP: A("v_mov_b32 v127, 0\nv_writelane_b32 v127, s96, 63\nv_writelane_b32 v127, s70, 62\ns_getreg_b32 s98, hwreg(HW_REG_HW_ID)\nv_writelane_b32 v127, s98, 58\ns_getpc_b64 s[98:99]\nv_writelane_b32 v127, s98, 56")
if P["DIAG"]: A("s_mov_b32 s94, s96")
stamp("issued0")
if STAMP and "ka" in P["STS"]:
    for n, r in (("pre_ka", "s94"), ("ka", "s100")):
        A("v_writelane_b32 v127, %s, %d ; stamp %s" % (r, nst[0], n)); nst[0] += 1
A(f"""
s_mov_b64 s[16:17], s[40:41]
s_mov_b32 s18, 0x4000000
s_mov_b32 s19, 0x20000
s_mov_b64 s[20:21], s[44:45]
s_mov_b32 s22, 0x400000
s_mov_b32 s23, 0x20000
s_mov_b64 s[28:29], s[74:75]
s_mov_b32 s30, {0x400000 if STAMP else WSZ}
s_mov_b32 s31, 0x20000
s_mov_b32 s34, 4096
s_mov_b32 s35, 0x20000
s_mov_b32 {sSPIN}, 0
v_and_b32 {vN}, 15, {vL}
v_and_b32 {vU}, 3, {vL}
v_bfe_u32 {vHB}, {vL}, 2, 2
v_mov_b32 {vFF}, 0xff
s_mul_i32 s80, {sW}, 1088
s_add_u32 s80, s80, {LXN}
v_lshl_add_u32 v24, {vL}, 4, s80
s_lshl_b32 s80, {sLO}, 8
s_add_u32 s80, s80, {LXN}
v_mul_u32_u24 v25, 1088, {vHB}
v_and_b32 v7, 1, {vG}
v_lshl_add_u32 v25, v7, 3, v25
v_and_b32 v7, 2, {vG}
v_lshl_add_u32 v25, v7, 5, v25
v_add_u32 v25, s80, v25
v_bfe_u32 v7, v9, 2, 1
v_and_b32 v13, 3, v9
v_lshl_add_u32 v13, v7, 4, v13
v_lshl_add_u32 v13, v13, 10, v10
v_lshl_add_u32 v7, {vG}, 2, {vHB}
v_and_b32 v9, 7, v7
v_lshlrev_b32 v9, 1, v9
v_xor_b32 v9, v9, {vU}
v_lshlrev_b32 v9, 3, v9
v_lshl_add_u32 v9, v7, 7, v9
s_lshl_b32 s80, {sW}, 5
v_xor_b32 v26, s80, v9
v_add_u32 v146, {LF}, v26               ; w1
s_add_u32 s80, {sW4K}, {LWO}
v_add_u32 v148, s80, v9
v_xor_b32 v149, 32, v148
v_xor_b32 v150, 64, v148
v_xor_b32 v151, 0x60, v148
v_lshlrev_b32 v7, 2, {vN}
v_lshl_add_u32 v29, {vG}, 13, v7
v_lshl_add_u32 v30, {vG}, 10, v7
v_lshl_add_u32 v7, {vG}, 8, v7
s_lshl_b32 s80, {sW}, 10
s_add_u32 s80, s80, {LRS}
v_add_u32 v147, s80, v7
v_add_u32 v161, 4096, v147
s_lshl_b32 s84, {sHKV}, 4
s_add_u32 s84, s84, {sLO}
s_lshl_b32 s84, s84, 3
s_add_u32 s84, s84, {sHI}
s_lshl_b32 s84, s84, 2
s_add_u32 s84, s84, {sW}
s_lshl_b32 s84, s84, 6
s_add_u32 s84, s84, {QP}
s_lshl_b32 s85, {sF0}, 1
s_lshr_b32 s80, {sW}, 1
s_add_u32 s85, s85, s80
s_lshl_b32 s85, s85, 5
s_add_u32 s85, s85, {sLO}
s_lshl_b32 s85, s85, 1
s_and_b32 s81, {sW}, 1
s_add_u32 s85, s85, s81
s_lshl_b32 s85, s85, 6
s_add_u32 s85, s85, {HP}
""")
if not TW: A("s_mul_i32 s70, s70, 0x01010101")
def late_setup():
    A(f"""
v_lshl_add_u32 v7, {vG}, 2, {vHB}
v_and_b32 v9, 7, v7
s_lshl_b32 s80, {sW}, 1
v_xor_b32 v9, s80, v9
v_lshlrev_b32 v9, 5, v9
v_lshl_add_u32 v9, v7, 8, v9
v_lshl_add_u32 v27, {vU}, 3, v9
v_xor_b32 v28, 32, v27
v_lshlrev_b32 v7, 1, {vG}
v_xor_b32 v144, {vN}, v7
v_lshlrev_b32 v144, 4, v144
v_lshl_add_u32 v144, {vG}, 8, v144
v_xor_b32 v145, 0x80, v144
s_lshl4_add_u32 s80, {sW}, {LP}
v_mul_u32_u24 v10, 576, {vG}
v_and_b32 v7, 14, {vN}
v_lshl_add_u32 v10, v7, 5, v10
v_and_b32 v7, 1, {vN}
v_lshl_add_u32 v10, v7, 3, v10
v_add_u32 v10, s80, v10
v_mul_u32_u24 v11, 576, {vHB}
v_lshl_add_u32 v11, {vG}, 4, v11
v_add_u32 v11, {LP}, v11
v_lshlrev_b32 v31, 4, {vN}
v_lshl_add_u32 v31, {vG}, 11, v31
s_lshl_b32 s86, {sHKV}, 2
s_add_u32 s86, s86, {sLO}               ; 4*hkv+lo
s_lshl_b32 s87, s86, 4
s_add_u32 s87, s87, {sW}
s_lshl_b32 s87, s87, 9
s_add_u32 s87, s87, {QP}
s_lshl_b32 s88, s86, 2
s_add_u32 s88, s88, {sW}                ; (4*hkv+h)*4+w
s_lshl_b32 s89, s88, 8
s_add_u32 s89, s89, {sCO}
s_lshl_b32 s89, s89, 7
s_lshl_b32 s88, s88, 12
s_add_u32 s88, s88, {OP}                ; O gather
s_lshl_b32 s90, s90, 12
s_add_u32 s90, s90, {HP}                ; h gather
v_xor_b32 v7, {vG}, {vN}
v_lshlrev_b32 v7, 4, v7
v_lshl_add_u32 v7, {vU}, 10, v7
v_lshl_add_u32 v7, {vHB}, 14, v7
s_add_u32 s80, {sW4K}, {LK}
v_add_u32 v152, s80, v7
v_xor_b32 v153, 64, v152
v_xor_b32 v154, 0x80, v152
v_xor_b32 v155, 0xc0, v152
v_lshrrev_b32 v7, 1, {vG}
v_and_b32 v9, 1, {vG}
v_lshlrev_b32 v7, 7, v7
v_lshl_add_u32 v7, {vN}, 3, v7
v_lshl_add_u32 v7, v9, 2, v7
s_mul_i32 s80, {sW}, 320
s_add_u32 s80, s80, {LQ}
v_add_u32 v156, s80, v7
v_mul_u32_u24 v157, 320, {vHB}
v_lshl_add_u32 v157, {vG}, 4, v157
v_add_u32 v157, {LQ}, v157
v_lshlrev_b32 v8, 4, {vG}
v_add_u32 v8, {LMX}, v8
s_lshl_b32 s80, {sW}, 2
v_add_u32 v9, s80, v8
v_lshlrev_b32 v12, 4, {vU}
v_lshl_add_u32 v12, {vG}, 7, v12
v_lshl_add_u32 v12, {vHB}, 10, v12
v_lshlrev_b32 v158, 3, {vN}
v_lshl_add_u32 v158, {vG}, 14, v158
v_and_b32 v7, 1, {vU}
v_lshl_add_u32 v159, v7, 2, {vG}
v_lshl_add_u32 v159, {vHB}, 3, v159
v_lshlrev_b32 v159, 4, v159
v_mov_b32 v160, 0
s_lshl_b32 s80, {sLO}, 3
s_add_u32 s80, s80, {sHI}               ; 8*b+s
s_lshl_b32 s81, {sHKV}, 2
s_add_u32 s81, s81, {sW}
s_lshl_b32 s81, s81, 5
s_add_u32 s81, s81, s80
s_lshl_b32 s81, s81, 4
s_add_u32 s36, s81, {ST}
s_lshl_b32 s37, {sHKV}, 16
s_add_u32 s37, s37, {sW4K}
s_lshl_b32 s80, s80, 7
s_add_u32 s37, s37, s80
s_add_u32 s37, s37, {OP}                ; O publish
s_lshl_b32 s46, s86, 9
s_add_u32 s46, s46, {ST}
v_lshlrev_b32 v164, 4, {vL}
v_add_u32 v165, {LRS}, v164
v_and_b32 v18, 7, {vN}
v_bfe_u32 v19, {vL}, 3, 1
v_lshl_add_u32 v19, {vG}, 4, v19
v_mul_u32_u24 v19, 6144, v19
v_lshl_add_u32 v166, v18, 4, v19
v_lshl_add_u32 v18, v18, 2, {vG}
v_lshlrev_b32 v167, 1, v18
s_mul_i32 s47, {sCO}, 12288
s_lshl_b32 s80, s86, 7
s_add_u32 s47, s47, s80
s_add_u32 s47, s47, {SP}                ; s publish
s_mul_i32 s40, {sC2}, 12288
s_lshl_b32 s80, {sF1}, 7
s_add_u32 s40, s40, s80
s_add_u32 s40, s40, {SP + 4096}         ; g publish
s_sub_u32 s41, s2, 192
""")
    if P["TK"] == 4:
        A(f"""s_lshl_b32 s41, {sCO}, 1
s_lshl4_add_u32 s41, {sW}, s41
v_bfe_u32 v18, {vL}, 3, 1
v_mul_u32_u24 v19, 6016, v18
v_lshl_add_u32 v19, {vN}, 4, v19
v_lshl_add_u32 v164, {vG}, 7, v19       ; half*6144 + 16*(n&7) + 128*g
v_lshl_add_u32 v167, v18, 6, v167
s_lshl_b32 s80, {sW}, 6
s_lshl_b32 s81, s41, 6
s_add_u32 s80, s80, s81
s_add_u32 s80, s80, {LXN}
v_add_u32 v163, s80, v167""")
    A(f"""s_mul_i32 s42, s41, 6144
s_add_u32 s42, s42, {SP}
s_add_u32 s43, s42, 4096
s_lshl_b32 s83, s41, 6
v_lshlrev_b32 v7, 4, v7
v_lshrrev_b32 v142, v7, {sE}            ; O tags
v_lshrrev_b32 v143, 8, v142
""")
if not P["LATE"]: late_setup()
def fast_load():
    if P["FAST"] == 1: A("s_load_dwordx8 s[44:51], s[72:73], s92")
def fast_eval():
    if P["FAST"] != 1: return
    for i in range(44, 52, 2): A("s_xor_b64 s[%d:%d], s[%d:%d], s[70:71]" % (i, i + 1, i, i + 1))
    A(f"s_or_b64 s[44:45], s[44:45], s[46:47]\ns_or_b64 s[48:49], s[48:49], s[50:51]\ns_or_b64 s[44:45], s[44:45], s[48:49]\ns_cselect_b32 {sFAST}, 1, 0")
def early_wait(n, lbl):
    opts = sorted(set(a + b for a in (KX, 4) for b in ((0,) if TW else (0, 1))))
    for o in opts[:-1]: A(f"s_cmp_gt_u32 s93, {o}\ns_cbranch_scc1 {lbl}_{o}\ns_waitcnt vmcnt({n + o})\n{lbl}_{o}:")
    A(f"s_waitcnt vmcnt({n + opts[-1]})")
A(f"s_cmp_eq_u32 {sW}, 3\ns_cselect_b32 s93, {1 if P['FAST'] == 1 and not TW else 0}, 0")
if W2P: A(f"s_cmp_eq_u32 {sROLE}, 1\ns_cselect_b32 s80, 4, {KX}\ns_add_u32 s93, s80, s93")
else: A(f"s_min_u32 s80, {sROLE}, 1\ns_lshl2_add_u32 s93, s80, s93")
early_wait(4 + HEAD, "L_xw")
stamp("x")
for i in range(4): A("v_lshlrev_b32 v%d, 16, v%d\nv_and_b32 v%d, 0xffff0000, v%d" % (32 + 2 * i, 20 + i, 33 + 2 * i, 20 + i))
A("v_readfirstlane_b32 s80, v32")
for i in range(8): A("v_subrev_f32 v%d, s80, v%d" % (44 + i, 32 + i))
A("v_add_f32 v40, v44, v45\nv_mul_f32 v42, v44, v44\nv_add_f32 v41, v46, v47\nv_mul_f32 v43, v45, v45")
for i in range(2, 8):
    A("v_fmac_f32 v%d, v%d, v%d" % (42 + i % 2, 44 + i, 44 + i))
    if i >= 4: A("v_add_f32 v%d, v%d, v%d" % (40 + i % 2, 40 + i % 2, 44 + i))
A("v_add_f32 v40, v40, v41\nv_add_f32 v42, v42, v43")
for c in ("quad_perm:[1,0,3,2]", "quad_perm:[2,3,0,1]", "row_half_mirror", "row_mirror"):
    for r in (40, 42): A("v_add_f32_dpp v%d, v%d, v%d %s %s" % (r, r, r, c, DPP))
for sw in ("16", "32"):
    A("v_mov_b32 v41, v40\nv_mov_b32 v43, v42\nv_permlane%s_swap_b32 v40, v41\nv_permlane%s_swap_b32 v42, v43\nv_add_f32 v40, v40, v41\nv_add_f32 v42, v42, v43" % (sw, sw))
A("v_mul_f32 v40, 0x3b000000, v40\nv_mul_f32 v42, 0x3b000000, v42\nv_fma_f32 v42, -v40, v40, v42\nv_add_f32 v40, s80, v40\nv_max_f32 v42, 0, v42")
rbf2(40, 42, 40, 42, 41)
A("v_add_f32 v42, 0x3727c5ac, v42"); rbf(42)
A("v_sqrt_f32 v42, v42")
for i in range(8): A("v_sub_f32 v%d, v%d, v40" % (32 + i, 32 + i))
rbf(42)
A("v_rcp_f32 v42, v42")
for i in range(4): rbf2(32 + 2 * i, 33 + 2 * i, 32 + 2 * i, 33 + 2 * i, 44 + i)
for i in range(8): A("v_mul_f32 v%d, v%d, v42" % (32 + i, 32 + i))
for i in range(4): A("v_cvt_pk_bf16_f32 v%d, v%d, v%d" % (44 + i, 32 + 2 * i, 33 + 2 * i))
A("ds_write_b128 v24, v[44:47]")
stamp("ln")
k_role(KS[0], KS[1])
A("s_waitcnt lgkmcnt(0)")
A(f"""s_add_u32 {sE}, {sE}, 0x9d5b3701
s_and_b32 {sT[0]}, {sE}, 0xff
s_bfe_u32 {sT[1]}, {sE}, 0x80008
s_bfe_u32 {sT[2]}, {sE}, 0x80010
s_lshr_b32 {sT[3]}, {sE}, 24
v_lshlrev_b32 v7, 3, {vU}
v_lshrrev_b32 v141, v7, {sE}
""")
if TW: A(f"s_xor_b32 s70, s70, {sE}\nv_mov_b32 v19, s70\ns_mov_b64 exec, 1\nbuffer_store_dword v19, off, {WS}, s71 offset:{TB}\ns_mov_b64 exec, -1")
early_wait(KS[1] + TW, "L_wqw")
A("s_barrier")
stamp("wq")
for t in range(4): A("ds_read2_b64 %s, v25 offset0:%d offset1:%d" % (vr(32 + 4 * t, 4), 2 * t, 2 * t + 16))
def proj(addr, lds, voff, soff, lbl):
    for t in range(4):
        for h in range(2): A("ds_read_b64_tr_b16 %s, %s offset:%d" % (vr(48 + 4 * t + 2 * h, 2), addr, lds + t * 4096 + h * 2048))
    for t in range(4):
        A("s_waitcnt lgkmcnt(%d)" % (6 - 2 * t)); mfma(64, 48 + 4 * t, 32 + 4 * t, "0" if t == 0 else None)
    A(f"v_bfi_b32 {lbl}, {vFF}, v141, v64\nbuffer_store_dword {lbl}, {voff}, {WS}, {soff} offen" + ("" if P["FAST"] else " sc1"))
proj("v26", LWQ, "v29", "s84", "v190")
stamp("qpub")
RP = P["RP"] if P["FAST"] == 1 else 0
if RP: A(f"v_lshlrev_b32 v189, 2, v0\nv_add_u32 v189, {LRS}, v189\nds_write_b32 v189, v190")

T4 = P["TK"] == 4
if T4:
    TKB = 0x7d000
    A(f"s_and_b32 s44, {sE}, 0xffffff00\ns_lshl2_add_u32 s45, {sCO}, {sW}\ns_lshl_b32 s45, s45, 7\ns_add_u32 s45, s45, {TKB}")
    A(f"s_lshl_b32 s80, s2, 2\ns_add_u32 s80, s80, {sW}\ns_cmp_eq_u32 s80, 1021\ns_cbranch_scc0 L_notk\nv_mov_b32 v69, s44\nv_lshlrev_b32 v70, 7, {vL}\ns_mov_b32 s80, {TKB}\ns_mov_b32 exec_hi, 0")
    A(f"buffer_store_dword v69, v70, {WS}, s80 offen sc1\ns_mov_b64 exec, -1\nL_notk:")
elif P["TK"]:
    A(f"s_and_b32 s44, {sE}, 0xffffff00\ns_lshl_b32 s45, {sCO}, 1\ns_add_u32 s45, s45, {sW}\ns_lshl_b32 s45, s45, 7\ns_add_u32 s45, s45, {TKB - 256}")
    A(f"s_lshl_b32 s80, s2, 2\ns_add_u32 s80, s80, {sW}\ns_cmp_eq_u32 s80, 1021\ns_cbranch_scc0 L_notk\nv_mov_b32 v69, s44\nv_lshlrev_b32 v70, 7, {vL}\ns_mov_b64 exec, 0xffff")
    A(f"buffer_store_dword v69, v70, {WS}, 0 offen offset:{TKB} sc1\ns_mov_b64 exec, -1\nL_notk:")
thr[0] = P["THR"]
k_role(KS[1], KS[2])
if P["LATE"]: late_setup()
if W2P: A(f"s_cmp_eq_u32 {sROLE}, 1\ns_cbranch_scc0 L_now1w")
A("s_waitcnt vmcnt(%d)\nL_now1w:\ns_waitcnt lgkmcnt(0)\ns_barrier" % (KS[2] - 3 + TW))
A(f"s_cmp_eq_u32 {sROLE}, 1\ns_cbranch_scc0 L_noh")
proj("v146", 0, "v30", "s85", "v191")
A("L_noh:")
stamp("hpub")
if P["XL"]: A("ds_write_b128 v24, v[20:23]")
def qgather(r=32):
    for i in range(2): A(f"buffer_load_dwordx4 {vr(r + 4 * i, 4)}, v31, {WS}, s87 offen offset:{256 * i} {PLD}")
def hgather():
    for i in range(2): A(f"buffer_load_dwordx4 {vr(132 + 4 * i, 4)}, v12, {WS}, s90 offen offset:{64 * i} {PLD}")
k_role(KS[2], 16)
seq = []
Q2 = P["QG2"]
for a in range(4):
    if a == NV0:
        if P["FAST"] == 1: A(f"v_and_b32 v19, 31, {vL}\nv_lshlrev_b32 v19, 2, v19" if TW else f"v_and_b32 v19, 28, {vL}\nv_add_u32 v19, s92, v19")
        if P["FAST"] == 1 and not RP: look()
        qgather(); seq += ["q1"] * 2
        stamp("qg_iss")
    if Q2 and a == NV0 + Q2: qgather(40); seq += ["q2"] * 2
    if a + 1 == P["PRE"]:
        A(f"buffer_load_dword v189, v158, {WS}, s37 offen\nbuffer_load_dword v189, v160, {WS}, s36 offen"); seq += ["p"] * 2
    if a == 2 and not W2P: hgather(); seq += ["h"] * 2
    if W2P == 5 and a == NV0:
        A(f"s_cmp_eq_u32 {sROLE}, 2\ns_cbranch_scc0 L_now2l"); w2_dma(); A("L_now2l:")
    if a < P["VQ"]: kv_dma(V, VO, LV, a); seq += ["v"] * 4
V3E = P["V3E"]
if V3E: kv_dma(V, VO, LV, 3); seq += ["v"] * 4
stamp("v2_iss")
A("s_waitcnt vmcnt(%d)" % seq[::-1].index("q1"))
for a in range(3):
    for j in range(4): A("ds_read_b128 %s, v%d offset:%d" % (vr(64 + 16 * a + 4 * j, 4), 152 + j, 256 * a))
def fast_chk(rep):
    A(f"v_cmp_ne_u32 vcc, s70, v18\ns_cmp_lg_u64 vcc, 0\ns_cselect_b32 {sFAST}, 1, 0")
    if rep: A(f"s_cbranch_scc0 L_norep\nbuffer_store_dword v190, v29, {WS}, s84 offen sc1\ns_cmp_eq_u32 {sROLE}, 1\ns_cbranch_scc0 L_norep\nbuffer_store_dword v191, v30, {WS}, s85 offen sc1\nL_norep:")
if P["FAST"] == 1 and not RP: fast_chk(1)
if Q2:
    untag(32, 8, 48)
    A("s_cbranch_vccz L_qok\ns_mov_b64 exec, vcc\ns_waitcnt vmcnt(%d)" % seq[::-1].index("q2"))
    for e in range(8): A("v_mov_b32 v%d, v%d" % (32 + e, 40 + e))
A("s_branch L_qchk\nL_qagain:")
if RP:
    A(f"s_cmp_eq_u32 {sSPIN}, {RP}\ns_cbranch_scc0 L_qnr\ns_mov_b64 s[80:81], exec\ns_mov_b64 exec, -1\nv_lshlrev_b32 v48, 2, {vL}\nv_add_u32 v48, {LRS}, v48")
    A("ds_read2st64_b32 v[50:51], v48 offset1:1\nds_read2st64_b32 v[52:53], v48 offset0:2 offset1:3\ns_andn2_b32 s82, s84, 0xc0\ns_waitcnt lgkmcnt(0)")
    for j in range(4): A(f"buffer_store_dword v{50 + j}, v29, {WS}, s82 offen offset:{64 * j} sc1")
    A("s_mov_b64 exec, s[80:81]\nL_qnr:")
qgather()
A("s_waitcnt vmcnt(0)\nL_qchk:")
untag(32, 8, 48)
retry("L_qagain", "L_qok")
stamp("q_ok")
rscatter8(32)
A("v_cvt_pk_bf16_f32 v32, v32, v33\nds_write_b32 v156, v32\ns_waitcnt lgkmcnt(0)\ns_barrier")
QB = 168
for j in range(4): A("ds_read_b128 %s, v157 offset:%d" % (vr(QB + 4 * j, 4), 64 * j))
for j in range(4): A("ds_read_b128 %s, v%d offset:%d" % (vr(112 + 4 * j, 4) if j < 3 else "v[128:131]", 152 + j, 256 * 3))
for j in range(4):
    A("s_waitcnt lgkmcnt(%d)" % (7 - j))
    for a in range(3): mfma(48 + 4 * a, 64 + 16 * a + 4 * j, QB + 4 * j, "0" if j == 0 else None)
A("s_waitcnt lgkmcnt(0)")
for j in range(4): mfma(60, 112 + 4 * j if j < 3 else 128, QB + 4 * j, "0" if j == 0 else None)
stamp("qk")
if P["VQ"] == 2: kv_dma(V, VO, LV, 2)
F2 = P["F2"] and P["FAST"] == 1 and not V3E
assert F2 or not RP
if F2: look()
if W2P == 4: A(f"s_cmp_eq_u32 {sROLE}, 2\ns_cbranch_scc0 L_now2l"); hgather(); w2_dma(); A("L_now2l:")
if not V3E and P["VQ"] == 3: kv_dma(V, VO, LV, 3)
stamp("v3_iss")
SWP = P["SWP"]
def wo_tile(): tile_dma(WO, "v13", "s89", 1024, LWO, (0, 8, 4, 12))
def wo_dma(pos):
    if P["WOP"] != pos: return
    if SWP: A(f"s_cmp_eq_u32 {sROLE}, 2\ns_cbranch_scc0 L_sw1"); hgather(); w2_dma(); A("s_branch L_sw2\nL_sw1:")
    wo_tile(); A("L_sw2:")
wo_dma(0)
rbf2(48, 49, 48, 52, 53); rbf2(50, 51, 56, 60, 54)
for e in range(4): A("v_mul_f32 v%d, 0x3db504f3, v%d" % (48 + e, 48 + e))
rbf2(48, 49, 48, 49, 52); rbf2(50, 51, 50, 51, 53)
A("v_max_f32 v52, v48, v49\nv_max3_f32 v52, v52, v50, v51")
ROW = ("quad_perm:[1,0,3,2]", "quad_perm:[2,3,0,1]", "row_half_mirror", "row_mirror")
for c in ROW: A("v_max_f32_dpp v52, v52, v52 %s %s" % (c, DPP))
A("ds_write_b32 v9, v52\ns_mov_b32 s80, 0x3fb8aa3b\ns_waitcnt lgkmcnt(0)\ns_barrier\nds_read_b128 v[52:55], v8\ns_waitcnt lgkmcnt(0)")
A("v_max_f32 v52, v52, v53\nv_max3_f32 v56, v52, v54, v55\nv_mul_f32 v52, 0xbfb8aa3b, v56")
for e in range(4): A("v_fma_f32 v%d, v%d, s80, v52" % (48 + e, 48 + e))
for e in range(4): A("v_exp_f32 v%d, v%d" % (48 + e, 48 + e))
A("v_add_f32 v52, v48, v49\nv_cvt_pk_bf16_f32 v54, v48, v49\nv_add_f32 v53, v50, v51\nv_cvt_pk_bf16_f32 v55, v50, v51\nv_add_f32 v52, v52, v53\nds_write_b64 v10, v[54:55]")
for c in ROW: A("v_add_f32_dpp v52, v52, v52 %s %s" % (c, DPP))
A("ds_write_b32 v9, v52 offset:64")
if P["VQ"] == 2: kv_dma(V, VO, LV, 3)
wo_dma(1)
stamp("p_done")
def wreads(r, off):
    for mt in range(4):
        for h in range(2): A("ds_read_b64_tr_b16 %s, v%d offset:%d" % (vr(r + 4 * mt + 2 * h, 2), 148 + mt, off + h * 2048))
def wstage(a, b, addr):
    for mt in range(4): mfma(32 + 4 * mt, a + 4 * mt, b, "0")
    for mt in (0, 2): A("ds_write2_b32 %s, v%d, v%d offset0:%d offset1:%d" % (addr, 32 + 4 * mt, 36 + 4 * mt, 16 * mt, 16 * mt + 16))
def ffn_b(n=None):
    A(f"s_cmp_eq_u32 {sROLE}, 2\ns_cbranch_scc0 L_noffn")
    if n: A("s_waitcnt vmcnt(%d)" % n)
    wreads(80, LF - LWO)
    if not W2P: A("s_waitcnt vmcnt(%d)" % (8 if P["WOP"] == 2 else 12))
    A("s_branch L_hchk\nL_hagain:")
    hgather()
    A("s_waitcnt vmcnt(0)\nL_hchk:")
    untag(132, 8, 140)
    retry("L_hagain", "L_hok")
    rscatter8(132)
    A("v_max_f32 v132, 0, v132\nv_max_f32 v133, 0, v133\nv_cvt_pk_bf16_f32 v132, v132, v133")
    quad_b(136, 132)
    A("s_waitcnt lgkmcnt(0)")
    wstage(80, 136, "v161")
    A("L_noffn:")
def w2_late(pos):
    if W2P == pos:
        A(f"s_cmp_eq_u32 {sROLE}, 2\ns_cbranch_scc0 L_now2l")
        if SWP: wo_tile()
        else: hgather(); w2_dma()
        A("L_now2l:")
def r2_wait(n, lbl, on, tail=""):
    if on: role_wait(n, on, lbl, f"eq_u32 {sROLE}, 2", tail)
    else: A(f"s_waitcnt vmcnt({n}) {tail}")
if not W2P: ffn_b()
w2_late(1)
stamp("ffn")
wo_dma(2)
r2_wait(4 if W4 else 8, "L_w012", 6 if W2P in (1, 4) else 2 * SWP, "lgkmcnt(0)"); A("s_barrier")
stamp("v012")
A("ds_read_b128 v[60:63], v8 offset:64")
def vreads(t, r):
    A("ds_read_b128 %s, v11 offset:%d" % (vr(64 + 4 * t, 4), 64 * t))
    vreads2(t, r)
def vreads2(t, r):
    for mt in range(2):
        for h in range(2): A("ds_read_b64_tr_b16 %s, v%d offset:%d" % (vr(r + 4 * mt + 2 * h, 2), 27 + mt, t * 8192 + h * 4096))
R3 = (96, 104, 112)
vreads(0, 96); vreads(1, 104)
A(f"v_mov_b32 v58, {sE}\nv_mov_b32 v59, {sE}\ns_lshl_b32 s80, {sW}, 4\ns_waitcnt lgkmcnt(10)")
if STAMP: A(f"s_cmp_ge_u32 {sSPIN}, {RP}\ns_cselect_b32 {sFAST}, 1, 0\n" * (RP > 0) + f"v_writelane_b32 v127, {sFAST}, 57")
if F2: fast_chk(RP)
A("v_add_f32 v60, v60, v61\nv_add_f32 v62, v62, v63")
vreads(2, 112)
A("v_add_f32 v57, v60, v62\ns_lshl_b64 exec, 1, s80")
gstore(f"buffer_store_dwordx4 v[56:59], v160, {WS}, s36 offen", "L_ss")
A("s_mov_b64 exec, -1")
w2_late(2)
for t in range(6):
    A("s_waitcnt lgkmcnt(%d)" % (10 if t < 4 else (7, 2)[t - 4]))
    for mt in range(2): mfma(40 + 4 * mt, R3[t % 3] + 4 * mt, 64 + 4 * t, "0" if t == 0 else None)
    if t + 3 < 6: vreads(t + 3, R3[t % 3])
    if t == 3: A("ds_read_b128 v[88:91], v11 offset:384\nds_read_b128 v[92:95], v11 offset:448")
def sgather(r=184): A(f"buffer_load_dwordx4 {vr(r, 4)}, v159, {WS}, s46 offen {PLD}")
def reduce_pub(d, addr, off, soff):
    for i in range(4): A("ds_read_b128 %s, %s offset:%d" % (vr(d + 4 * i, 4), addr, off + 1024 * i))
    A("s_waitcnt lgkmcnt(2)")
    for e in range(0, 4, 2): A("v_pk_add_f32 %s, %s, %s" % (vr(d + e, 2), vr(d + e, 2), vr(d + 4 + e, 2)))
    A("s_waitcnt lgkmcnt(0)")
    for e in range(0, 4, 2): A("v_pk_add_f32 %s, %s, %s" % (vr(d + 8 + e, 2), vr(d + 8 + e, 2), vr(d + 12 + e, 2)))
    for e in range(0, 4, 2): A("v_pk_add_f32 %s, %s, %s" % (vr(d + e, 2), vr(d + e, 2), vr(d + 8 + e, 2)))
    tag(d)
    A(f"buffer_store_dwordx4 {vr(d, 4)}, v166, {WS}, {soff} offen {PST}")
w2_late(3)
sgather()
if P["GE"] == 1:
    A(f"s_lshl_b32 s80, {sW}, 2\ns_add_u32 s80, s80, {sROLE}\ns_cmp_eq_u32 s80, 6\ns_cbranch_scc0 L_nog")
    reduce_pub(168, "v165", 4096, "s40")
    A("s_waitcnt vmcnt(7)\ns_branch L_gdone\nL_nog:")
stamp("pv1")
r2_wait(2 if W4 else 6, "L_w3", 6 if W2P and not W4 else 0); A("L_gdone:\ns_barrier")
stamp("v3")
vreads2(6, 96); vreads2(7, 104)
for t in (6, 7):
    A("s_waitcnt lgkmcnt(%d)" % (4 * (7 - t)))
    for mt in range(2): mfma(40 + 4 * mt, R3[t - 6] + 4 * mt, 64 + 4 * t)
A(f"v_bfi_b32 v48, {vFF}, v142, v40\nv_bfi_b32 v49, {vFF}, v143, v44")
gstore(f"buffer_store_dwordx2 v[48:49], v158, {WS}, s37 offen", "L_os")
stamp("o_pub")
def ogather():
    for sh in range(2):
        for i in range(2): A(f"buffer_load_dwordx4 {vr(64 + 8 * sh + 4 * i, 4)}, v12, {WS}, s88 offen offset:{512 * sh + 64 * i} {PLD}")
SCHK = f"v_bitop3_b32 v186, v186, v187, {sE} bitop3:0x7e\nv_cmp_ne_u32 vcc, 0, v186"
if SWP and P["FB"]: ffn_b(7)
if W4:
    wo_tile(); ffn_b()
    if P["OW"]: A("s_waitcnt vmcnt(4)")
if P["SG2"]:
    sgather(56); ogather()
    if P["JP"]: A("s_mov_b64 s[50:51], -1")
    if SWP and not P["FB"]: ffn_b(12)
    if P["GE"] == 2:
        A(f"s_cmp_eq_u32 {sROLE}, 2\ns_cbranch_scc0 L_nog\ns_cmp_eq_u32 {sW}, 1\ns_waitcnt lgkmcnt(0)\ns_barrier\ns_cbranch_scc0 L_nog")
        reduce_pub(168, "v165", 4096, "s40")
        A("L_nog:")
    A("s_waitcnt vmcnt(%d)" % (5 if W4 else 6))
    stamp("wo_land")
    if W2P and not SWP and not W4: ffn_b()
    A(SCHK)
    wreads(96, 0)
    A("s_cbranch_vccz L_sok2\ns_mov_b64 exec, vcc\ns_waitcnt vmcnt(4)")
    for e in range(4): A("v_mov_b32 v%d, v%d" % (184 + e, 56 + e))
    if P["JP"]:
        A(SCHK + "\ns_cbranch_vccz L_sok1\ns_waitcnt vmcnt(0)\nL_sagain:\ns_mov_b64 s[48:49], vcc\ns_mov_b64 exec, vcc")
        sgather()
        A("s_mov_b64 exec, s[50:51]"); untag(64, 16, 61)
        A("s_mov_b64 s[50:51], vcc\ns_cbranch_vccz L_noog\ns_mov_b64 exec, vcc"); ogather()
        A("L_noog:\ns_mov_b64 exec, s[48:49]\ns_waitcnt vmcnt(0)\n" + SCHK)
        retry("L_sagain", "L_sok")
    else:
        A(SCHK + "\ns_cbranch_vccz L_sok1\ns_mov_b64 exec, vcc\nL_sagain:")
        sgather()
        A("s_waitcnt vmcnt(0)\n" + SCHK)
        retry("L_sagain", "L_sok")
        ogather()
    A("L_sok1:\ns_mov_b64 exec, -1\nL_sok2:")
else:
    ogather()
    if SWP and not P["FB"]: ffn_b(11)
    A("s_waitcnt vmcnt(5)")
    stamp("wo_land")
    if W2P and not SWP: ffn_b()
    wreads(96, 0)
    A("s_branch L_schk\nL_sagain:")
    sgather()
    A("s_waitcnt vmcnt(0)\nL_schk:\n" + SCHK)
    retry("L_sagain", "L_sok")
A(f"v_max_f32_dpp v60, v184, v184 quad_perm:[1,0,3,2] {DPP}")
allred_g("v_max_f32", 60, 61)
A("v_sub_f32 v60, v184, v60\nv_mul_f32 v60, 0x3fb8aa3b, v60\nv_exp_f32 v60, v60\nv_mul_f32 v61, v60, v185")
A(f"v_add_f32_dpp v61, v61, v61 quad_perm:[1,0,3,2] {DPP}")
allred_g("v_add_f32", 61, 62)
A("v_rcp_f32 v61, v61\nv_mul_f32 v60, v60, v61")
A(f"v_mov_b32_dpp v62, v60 quad_perm:[0,0,0,0] {DPP}\nv_mov_b32_dpp v63, v60 quad_perm:[1,1,1,1] {DPP}")
stamp("st_ok")
if P["JP"] and P["SG2"]: A("s_mov_b64 exec, s[50:51]")
A("s_branch L_ow\nL_oagain:")
ogather()
A("L_ow:")
untag16(64, 61)
retry("L_oagain", "L_ook")
stamp("o_ok")
def ticket():
    A(f"v_mov_b32 v60, 1\ns_mov_b64 exec, 1\nbuffer_atomic_add v60, v160, {WS}, s45 offen sc0 sc1\ns_mov_b64 exec, -1")
if P["TK"] == 3:
    A(f"s_cmp_ge_u32 {sW}, 2\ns_cbranch_scc0 L_tk3"); ticket(); A("L_tk3:")
for e in range(0, 8, 2): A("v_pk_mul_f32 %s, %s, v[62:63] op_sel_hi:[1,0]" % (vr(64 + e, 2), vr(64 + e, 2)))
for e in range(0, 8, 2): A("v_pk_fma_f32 %s, %s, v[62:63], %s op_sel:[0,1,0]" % (vr(64 + e, 2), vr(72 + e, 2), vr(64 + e, 2)))
rscatter8(64, True)
A("v_cvt_pk_bf16_f32 v64, v64, v65")
quad_b(68, 64)
A("s_waitcnt lgkmcnt(0)")
wstage(96, 68, "v147")
if not P["GE"]: A(f"v_add_u32 v165, {sW4K}, v165\ns_cmp_eq_u32 {sW}, 0\ns_cselect_b32 s47, s47, s40")
if P["TK"] == 2:
    A(f"s_cmp_ge_u32 {sW}, 2\ns_cbranch_scc0 L_tk2"); ticket(); A("L_tk2:")
A(f"s_cmp_ge_u32 {sW}, 2\ns_waitcnt lgkmcnt(0)\ns_barrier")
if T4: ticket()
A("s_cbranch_scc1 L_final")
LX = "L_final" if T4 else "L_done"
if P["GE"]: A(f"s_cmp_eq_u32 {sW}, 0\ns_cbranch_scc0 {LX}")
else: A(f"s_lshl_b32 s80, {sW}, 1\ns_andn2_b32 s80, s80, {sROLE}\ns_cbranch_scc1 {LX}")
reduce_pub(32, "v165", 0, "s47")
stamp("s_pub")
A("s_waitcnt vmcnt(1)\ns_branch L_tkr" if T4 else "s_branch L_done")
A("L_final:")
if P["TK"]:
    if P["TK"] >= 2: A("s_branch L_tkw")
    A("L_tkagain:"); ticket()
    A(f"""L_tkw:
s_waitcnt vmcnt(0)
L_tkr:
v_readfirstlane_b32 s41, v60
s_xor_b32 s41, s41, s44
s_cmp_lt_u32 s41, 32
s_cbranch_scc1 L_tkok
s_add_u32 {sSPIN}, {sSPIN}, 1
s_cmp_lt_u32 {sSPIN}, {P["SPIN"]}
s_cbranch_scc1 L_tkagain
s_branch L_done
L_tkok:""")
    if T4: A("s_cmp_eq_u32 s41, 31\ns_cbranch_scc0 L_done")
    else: A(f"""s_sub_u32 s41, s41, 28
s_cbranch_scc1 L_done
s_lshl_b32 s41, s41, 4
s_bfe_u32 s80, s45, 0x40007
s_add_u32 s41, s41, s80
s_mul_i32 s42, s41, 6144
s_add_u32 s42, s42, {SP}
s_add_u32 s43, s42, 4096
s_lshl_b32 s83, s41, 6""")
    stamp("tk")
    if STAMP: A(f"s_mov_b32 {sSPIN}, 100")
else: A(f"s_cmp_eq_u32 {sW}, 2\ns_cbranch_scc0 L_done\ns_cmp_lt_u32 s41, 64\ns_cbranch_scc0 L_done")
if T4: pass
elif P["XL"]: A(f"s_lshr_b32 s80, s41, 4\ns_lshl_b32 s80, s80, 6\ns_add_u32 s80, s80, s83\ns_add_u32 s80, s80, {LXN}\nv_add_u32 v62, s80, v167")
else: A(f"buffer_load_ushort v60, v167, {X}, s83 offen")
def pka(d, a, b, n):
    for e in range(0, n, 2): A("v_pk_add_f32 %s, %s, %s" % (vr(d + e, 2), vr(a + e, 2), vr(b + e, 2)))
def ggather(l):
    A(f"buffer_load_dwordx4 v[48:51], v164, {WS}, s43 offen {PLD}")
    for e in range(4): A("v_mov_b32 v%d, %s" % (52 + e, sT[e]))
    A(f"s_mov_b32 s80, exec_hi\ns_and_b32 exec_hi, exec_hi, 0xffff\ns_cbranch_execz {l}\nbuffer_load_dwordx4 v[52:55], v164, {WS}, s43 offen offset:1024 {PLD}\n{l}:\ns_mov_b32 exec_hi, s80")
def fgather():
    for i in range(4): A(f"buffer_load_dwordx4 {vr(32 + 4 * i, 4)}, v164, {WS}, s42 offen offset:{1024 * i} {PLD}")
def red8(r):
    for e in range(2): A("v_permlane32_swap_b32 v%d, v%d" % (r + e, r + 2 + e))
    pka(r, r, r + 2, 2)
    A("v_permlane16_swap_b32 v%d, v%d\nv_add_f32 v%d, v%d, v%d\nv_add_f32_dpp v%d, v%d, v%d row_ror:8 %s" % (r, r + 1, r, r, r + 1, r, r, r, DPP))
    rbf(r)
def final4():
    def gg(l):
        for i in range(3): A(f"buffer_load_dwordx4 {vr(64 + 4 * i, 4)}, v164, {WS}, s43 offen offset:{512 * i} {PLD}")
        for e in range(4): A("v_mov_b32 v%d, %s" % (76 + e, sT[e]))
        A(f"s_mov_b32 s80, exec_hi\ns_mov_b32 exec_hi, 0\ns_cbranch_execz {l}\nbuffer_load_dwordx4 v[76:79], v164, {WS}, s43 offen offset:1536 {PLD}\n{l}:\ns_mov_b32 exec_hi, s80")
    def fg():
        for i in range(8): A(f"buffer_load_dwordx4 {vr(80 + 4 * i, 4)}, v164, {WS}, s42 offen offset:{512 * i} {PLD}")
    def red4(r):
        for e in range(2): A("v_permlane32_swap_b32 v%d, v%d" % (r + e, r + 2 + e))
        pka(r, r, r + 2, 2)
        A("v_permlane16_swap_b32 v%d, v%d\nv_add_f32 v%d, v%d, v%d" % (r, r + 1, r, r, r + 1)); rbf(r)
    gg("L_gs1"); fg()
    A("ds_read_u16 v60, v163\ns_waitcnt vmcnt(8) lgkmcnt(0)\ns_branch L_gchk\nL_gagain:")
    gg("L_gs2")
    A("s_waitcnt vmcnt(0)\nL_gchk:")
    untag(64, 16, 61); retry("L_gagain", "L_gok")
    pka(64, 64, 72, 8); pka(64, 64, 68, 4)
    A("v_lshlrev_b32 v60, 16, v60"); red4(64)
    A("v_mul_f32 v65, 0xbfb8aa3b, v64\nv_exp_f32 v65, v65\nv_add_f32 v65, 1.0, v65\nv_rcp_f32 v65, v65\nv_mul_f32 v64, v64, v65"); rbf(64)
    A("s_branch L_fchk\nL_fagain:"); fg()
    A("L_fchk:\ns_waitcnt vmcnt(4)")
    for e in range(16): A("v_xor_b32 v%d, %s, v%d" % (80 + e, sT[e % 4], 80 + e))
    for e in range(0, 16, 2): A("v_or3_b32 v62, v%d, v%d, %s" % (80 + e, 81 + e, "v62" if e else "0"))
    pka(32, 80, 88, 8); pka(32, 32, 36, 4)
    A("s_waitcnt vmcnt(0)")
    for e in range(16): A("v_xor_b32 v%d, %s, v%d" % (96 + e, sT[e % 4], 96 + e))
    for e in range(0, 16, 2): A("v_or3_b32 v62, v%d, v%d, v62" % (96 + e, 97 + e))
    A(f"v_and_b32 v62, v62, {vFF}\nv_cmp_ne_u32 vcc, 0, v62")
    retry("L_fagain", "L_fok")
    stamp("f_ok")
    pka(96, 96, 104, 8); pka(96, 96, 100, 4); pka(32, 32, 96, 4)
    red4(32)
    A("v_mul_f32 v32, v32, v64"); rbf(32)
    A("v_add_f32 v32, v60, v32\nv_cvt_pk_bf16_f32 v32, v32, v32")
    A(f"buffer_store_short v32, v167, {OUT}, s83 offen")
    A(f"s_cmp_eq_u32 s83, 0\ns_cbranch_scc0 L_done\nv_mov_b32 v33, {sE}\ns_mov_b64 exec, 1\nbuffer_store_dword v33, v160, {WS}, 0 offen")
def final1():
    ggather("L_gs1")
    if P["FIN"] == 2: A("s_waitcnt vmcnt(0)")
    fgather()
    if P["XL"]: A("ds_read_u16 v60, v62")
    A("s_waitcnt vmcnt(4) lgkmcnt(0)\ns_branch L_gchk\nL_gagain:")
    ggather("L_gs2")
    A("s_waitcnt vmcnt(0)\nL_gchk:")
    untag(48, 8, 61)
    retry("L_gagain", "L_gok")
    pka(48, 48, 52, 4)
    A("v_lshlrev_b32 v60, 16, v60")
    red8(48)
    A("v_mul_f32 v49, 0xbfb8aa3b, v48\nv_exp_f32 v49, v49\nv_add_f32 v49, 1.0, v49\nv_rcp_f32 v49, v49\nv_mul_f32 v48, v48, v49")
    rbf(48)
    A("s_branch L_fchk\nL_fagain:")
    fgather()
    A("L_fchk:")
    untag16(32, 61)
    retry("L_fagain", "L_fok")
    stamp("f_ok")
    pka(32, 32, 40, 8); pka(32, 32, 36, 4)
    red8(32)
    A("v_mul_f32 v32, v32, v48"); rbf(32)
    A("v_add_f32 v32, v60, v32\nv_cvt_pk_bf16_f32 v32, v32, v32")
    A(f"s_mov_b32 exec_lo, 0x00ff00ff\ns_mov_b32 exec_hi, 0x00ff00ff\nbuffer_store_short v32, v167, {OUT}, s83 offen")
    A(f"s_cmp_eq_u32 s41, 0\ns_cbranch_scc0 L_done\nv_mov_b32 v33, {sE}\ns_mov_b64 exec, 1\nbuffer_store_dword v33, v160, {WS}, 0 offen")
final4() if T4 else final1()
A("L_done:")
if P["DIAG"]:
    stamp("end")
    if P["DG"] >= 0: A(f"s_cmp_eq_u32 {sHKV}, {P['DG']}\ns_cselect_b32 s94, s94, s96")
    if P["DIAG"] == "xcc": A("s_and_b32 s94, s70, 7\ns_mul_i32 s94, s94, 100\ns_cmp_eq_u32 s2, 3\ns_cselect_b32 s94, s94, 0\ns_add_u32 s94, s94, s96")
    A("s_sub_u32 s94, s94, s96\ns_lshl_b32 s94, s94, 2\ns_add_u32 s94, s94, 4000\nL_diag:\ns_memrealtime s[98:99]\ns_waitcnt lgkmcnt(0)\ns_sub_u32 s98, s98, s96\ns_cmp_lt_u32 s98, s94\ns_cbranch_scc1 L_diag")
if STAMP:
    A("s_mov_b64 exec, -1")
    stamp("end")
    A(f"v_writelane_b32 v127, {sSPIN}, 61\nv_writelane_b32 v127, {sFAST}, 59")
    A(f"s_lshl_b32 s80, s2, 10\ns_add_u32 s80, s80, {STP}\nv_lshlrev_b32 v7, 2, v0\nbuffer_store_dword v127, v7, {WS}, s80 offen")
A("L_end:\ns_endpgm\n.fill 9472 - (. - %s), 1, 0" % KN if not STAMP else "L_end:\ns_endpgm\n.fill 2048, 1, 0")
if P["TOT"]: A(".fill %d - (. - %s), 1, 0" % (P["TOT"] - P["PAD"], KN))
hdr = open("recurrent_scan__sliding_block_cached__dense_activation_relu__decode.s.ref").read().split("; Override launch")[0]
print(hdr + "; @launch grid=(256,1,1) block=(256,1,1) lds=%d" % LDS_BYTES)
print('.amdgcn_target "amdgcn-amd-amdhsa--gfx950"\n.text\n' + (".p2align %d\n" % P["AL"] if P["AL"] else "") + (".fill %d, 1, 0\n" % P["PAD"] if P["PAD"] else "") + '.globl %s\n.p2align 8\n.type %s,@function\n%s:' % (KN, KN, KN))
print(A.text())
print('.section .rodata,"a"\n' + (".fill %d, 1, 0\n" % -P["RPAD"] if P["RPAD"] < 0 else "") + '.p2align 6\n.amdhsa_kernel %s\n  .amdhsa_next_free_vgpr 192\n  .amdhsa_next_free_sgpr 102\n  .amdhsa_accum_offset 192\n  .amdhsa_group_segment_fixed_size 0\n  .amdhsa_kernarg_size 88\n  .amdhsa_user_sgpr_count 2\n  .amdhsa_user_sgpr_kernarg_segment_ptr 1\n  .amdhsa_system_sgpr_workgroup_id_x 1\n.end_amdhsa_kernel' % KN)
if P["RPAD"] > 0: print(".fill %d, 1, 0" % P["RPAD"])
```
